```python
import torch

def _softmax(x, axis=-1):
    return torch.softmax(x, dim=axis)
def _gelu(x):
    return torch.nn.functional.gelu(x, approximate="tanh")
def _silu(x):
    return torch.nn.functional.silu(x)
def _sigmoid(x):
    return torch.sigmoid(x)
def _layernorm(x, axis=-1, eps=1e-5):
    m = x.mean(dim=axis, keepdim=True)
    v = x.var(dim=axis, keepdim=True, unbiased=False)
    return (x - m) / torch.sqrt(v + eps)
def _scatter_add(tgt, idx, src, axis=0):
    return tgt.clone().index_add_(axis, idx, src)
def _segment_sum(src, seg, n):
    out = torch.zeros((n,) + src.shape[1:], dtype=src.dtype)
    return out.index_add_(0, seg, src)
def _pad(x, pw):
    flat = tuple(v for pair in reversed(pw) for v in pair)
    return torch.nn.functional.pad(x, flat)

kernel_name = 'concat_heads__linear_attn_block__grouped_kv_mqa__prompt'

def setup_inputs():

    _w = (lambda a: (lambda t: t.to(torch.bfloat16) if t.is_floating_point() else t)(torch.as_tensor(a)))
    def _A_setup():
        B, S, D = 1, 2048, 512
        return {
            "x": _w((lambda *s: torch.randn(*s, dtype=torch.bfloat16) * 0.05)(B, S, D)),
            "wqkv": _w((lambda *s: torch.randn(*s, dtype=torch.bfloat16) * 0.8)(D, 3 * D)),
            "wo": _w((lambda *s: torch.randn(*s, dtype=torch.bfloat16) * 0.05)(D, D)),
        }
    _A_in = _A_setup()

    def _B_setup():
        B, S, D, H = 1, 2048, 512, 32
        Dh = D // H
        return {
            "x": _w((lambda *s: torch.randn(*s, dtype=torch.bfloat16) * 0.05)(B, S, D)),
            "wq": _w((lambda *s: torch.randn(*s, dtype=torch.bfloat16) * 1.6)(D, H * Dh)),
            "wk": _w((lambda *s: torch.randn(*s, dtype=torch.bfloat16) * 1.6)(D, Dh)),
            "wv": _w((lambda *s: torch.randn(*s, dtype=torch.bfloat16) * 0.05)(D, Dh)),
            "wo": _w((lambda *s: torch.randn(*s, dtype=torch.bfloat16) * 0.05)(H * Dh, D)),
        }
    _B_in = _B_setup()

    return {
        "A_x": _A_in["x"],
        "A_wqkv": _A_in["wqkv"],
        "A_wo": _A_in["wo"],
        "B_x": _B_in["x"],
        "B_wq": _B_in["wq"],
        "B_wk": _B_in["wk"],
        "B_wv": _B_in["wv"],
        "B_wo": _B_in["wo"],
    }

def reference(A_x, A_wqkv, A_wo, B_x, B_wq, B_wk, B_wv, B_wo):
    def _A_ref(x, wqkv, wo):
        B, S, D = x.shape
        H = 32; Dh = D // H
        qkv = (lambda x, *d: x.permute(*d))((x @ wqkv).reshape(B, S, 3, H, Dh), 2, 0, 3, 1, 4)
        q, k, v = qkv[0], qkv[1], qkv[2]
        phi = lambda t: torch.where(t > 0, t + 1, torch.exp(t)) + 1e-6
        pq, pk = phi(q), phi(k)
        kv = torch.einsum("bhsd,bhse->bhde", pk, v)
        z = torch.einsum("bhsd->bhd", pk)
        num = torch.einsum("bhqd,bhde->bhqe", pq, kv)
        den = torch.einsum("bhqd,bhd->bhq", pq, z)[..., None] + 1e-6
        o = num / den
        return (lambda x, *d: x.permute(*d))(o, 0, 2, 1, 3).reshape(B, S, D) @ wo

    def _B_ref(x, wq, wk, wv, wo):
        B, S, D = x.shape
        H = 32
        Dh = D // H
        q = (lambda x, *d: x.permute(*d))((x @ wq).reshape(B, S, H, Dh), 0, 2, 1, 3)
        k = x @ wk
        v = x @ wv
        scores = torch.einsum("bhqd,bkd->bhqk", q, k) * (Dh ** -0.5)
        p = _softmax(scores, axis=-1)
        o = torch.einsum("bhqk,bkd->bhqd", p, v)
        return (lambda x, *d: x.permute(*d))(o, 0, 2, 1, 3).reshape(B, S, H * Dh) @ wo

    a = _A_ref(A_x, A_wqkv, A_wo)
    b = _B_ref(B_x, B_wq, B_wk, B_wv, B_wo)
    return torch.concatenate([a, b], axis=-1)
```

```python
import re
REG = re.compile(r'^(-|\|)?([vsa])(\d+)$')
RNG = re.compile(r'^(-|\|)?([vsa])\[(\d+):(\d+)\]$')
def regs(tok):
    tok = tok.strip()
    tok = tok.replace('abs(', '').replace(')', '')
    m = REG.match(tok)
    if m: return {(m.group(2), int(m.group(3)))}
    m = RNG.match(tok)
    if m: return {(m.group(2), i) for i in range(int(m.group(3)), int(m.group(4)) + 1)}
    if tok == 'vcc': return {('s', 106), ('s', 107)}
    if tok == 'exec': return {('x', 0)}
    if tok == 'm0': return {('m', 0)}
    return set()
TRANS = ('v_exp_f32', 'v_log_f32', 'v_rcp_f32', 'v_rsq_f32', 'v_sqrt_f32')
class Ins:
    def __init__(s, text, ln):
        s.text, s.ln = text, ln
        t = text.split(';')[0].strip()
        p = t.split(None, 1)
        s.op = p[0]
        rest = p[1] if len(p) > 1 else ''
        ops = [o.strip() for o in rest.split(',')] if rest else []
        s.mods = ''
        if ops:
            q = ops[-1].split(None, 1)
            ops[-1] = q[0]
            s.mods = q[1] if len(q) > 1 else ''
        s.ops = ops
        op = s.op
        R = [regs(o) for o in ops]
        s.defs, s.uses = set(), set()
        s.mfma = op.startswith('v_mfma') or op.startswith('v_smfmac')
        s.valu = op.startswith('v_') and not s.mfma
        s.vmem = op.startswith('buffer_') or op.startswith('global_')
        s.ds = op.startswith('ds_')
        s.salu = op.startswith('s_')
        s.srcc = set(); s.srcab = set()
        s.ws = 1
        if op == 's_nop': s.ws = int(ops[0], 0) + 1
        U = lambda lst: set().union(*lst) if lst else set()
        if s.mfma:
            s.defs = R[0]; s.srcab = R[1] | R[2]
            if op.startswith('v_smfmac'):
                s.srcc = R[0]; s.srcab |= R[3]
            else:
                s.srcc = R[3]
            s.uses = s.srcab | s.srcc
            s.passes = 8 if '32x32' in op else 4
        elif op.startswith('v_permlane') and 'swap' in op:
            s.defs = R[0] | R[1]; s.uses = R[0] | R[1]
        elif s.valu:
            s.defs = R[0]; s.uses = U(R[1:])
            if op.startswith('v_fmac') or op.startswith('v_pk_fmac') or 'dpp' in s.mods or 'row_' in s.mods or 'quad_perm' in s.mods: s.uses |= R[0]
            if op.startswith('v_cndmask') and len(ops) == 3: s.uses |= regs('vcc')
        elif s.ds:
            if op.startswith('ds_read') or '_rtn' in op or op.startswith('ds_swizzle') or op.startswith('ds_bpermute'):
                s.defs = R[0]; s.uses = U(R[1:])
            else: s.uses = U(R)
        elif s.vmem:
            if 'load' in op and ' lds' not in (' ' + s.mods):
                s.defs = R[0]; s.uses = U(R[1:])
            else:
                s.uses = U(R)
                if ' lds' in (' ' + s.mods): s.uses |= regs('m0')
        elif s.salu:
            if op.startswith(('s_cmp', 's_cbranch', 's_branch', 's_waitcnt', 's_barrier', 's_nop', 's_setprio', 's_sleep', 's_endpgm', 's_setpc', 's_bitcmp')):
                s.uses = U(R)
            else:
                s.defs = R[0] if R else set(); s.uses = U(R[1:])
                if 'saveexec' in op: s.defs = s.defs | regs('exec')
        s.dpp = s.valu and ('row_' in s.mods or 'quad_perm' in s.mods or 'wave_' in s.mods)
        s.widestore = (s.vmem and 'store' in op and ('x4' in op or 'x3' in op))
def need(p, c):
    n = 0
    vd = {r for r in p.defs if r[0] in 'va'}
    sd = {r for r in p.defs if r[0] == 's'}
    if p.valu:
        if c.mfma and vd & c.uses: n = max(n, 2)
        if p.op.startswith(TRANS) and c.valu and not c.op.startswith(TRANS) and vd & c.uses: n = max(n, 1)
        if p.op.startswith(TRANS) and c.valu and vd & c.uses: n = max(n, 1)
        if c.op.startswith(('v_readlane', 'v_readfirstlane')) and vd & c.uses: n = max(n, 1)
        if c.dpp and vd & c.uses: n = max(n, 2)
        if c.op.startswith('v_permlane') and vd & c.uses: n = max(n, 2)
        if sd:
            if c.vmem and sd & c.uses: n = max(n, 5)
            if c.valu and sd & c.uses: n = max(n, 4 if c.op.startswith(('v_readlane', 'v_writelane')) else 2)
            if c.salu and sd & c.uses: n = max(n, 1)
        if 'sdwa' in p.op or 'op_sel' in p.mods:
            if c.valu and vd & (c.uses | c.defs): n = max(n, 1)
    if p.mfma:
        big = p.passes + 4
        if c.mfma:
            if vd & c.srcab: n = max(n, big)
            if vd & c.srcc:
                if not (p.defs == c.srcc and p.passes == c.passes): n = max(n, p.passes + 2)
            elif vd & c.defs: n = max(n, p.passes + 2)
        elif (c.valu or c.vmem or c.ds) and vd & (c.uses | c.defs): n = max(n, big)
        if c.valu and p.srcc & c.defs: n = max(n, p.passes - 1)
    if p.salu and ('m', 0) in p.defs and (('m', 0) in c.uses): n = max(n, 1)
    if p.widestore and (c.valu or c.mfma):
        data = regs(p.ops[0]) if p.op.startswith('buffer') else regs(p.ops[1])
        if data & c.defs: n = max(n, 2)
    return n
def check(lines):
    ins, labels = [], {}
    for ln, l in enumerate(lines):
        t = l.split(';')[0].strip()
        if not t or t.startswith('.'): continue
        if t.endswith(':'):
            labels[t[:-1]] = len(ins); continue
        ins.append(Ins(l, ln))
    def succ(i):
        x = ins[i]
        if x.op == 's_endpgm' or x.op.startswith('s_setpc'): return []
        if x.op == 's_branch': return [labels[x.ops[0]]]
        r = [i + 1] if i + 1 < len(ins) else []
        if x.op.startswith('s_cbranch'): r.append(labels[x.ops[0]])
        return r
    errs = []
    for i, p in enumerate(ins):
        if not (p.valu or p.mfma or p.widestore or (p.salu and ('m', 0) in p.defs)): continue
        lim = 12 if p.mfma else 5
        best = {}
        stack = [(j, 0) for j in succ(i)]
        while stack:
            j, d = stack.pop()
            if j >= len(ins) or d >= lim: continue
            if j in best and best[j] <= d: continue
            best[j] = d
            c = ins[j]
            n = need(p, c)
            if n > d: errs.append(f'L{p.ln+1} [{p.text.strip()}] -> L{c.ln+1} [{c.text.strip()}]: need {n}, have {d}')
            for k in succ(j): stack.append((k, d + c.ws))
    return errs
```

```python
import sys, struct
from hazard import check

NAME = 'concat_heads__linear_attn_block__grouped_kv_mqa__prompt'
DIAG = '--diag' in sys.argv
def f32(x): return '0x%08x' % struct.unpack('<I', struct.pack('<f', x))[0]

GEN, F1, F2, F3, F4 = 0, 0x1000, 0x2000, 0x4000, 0x8000
KF, VF, PART, OA, OB, DBG = 0x10000, 0x20000, 0x100000, 0x200000, 0x400000, 0x800000
WS_BYTES = 0x1000000
SLOT = 45056; WREG = 24576
KVS = 135168
PK, VV, PQ = 0, 8192, 16384
OSUM = 131072
QX, QN, KVX, DUMMY, CNT = 149504, 157696, 158976, 161024, 163584
C_TICKET, C_DONE, C_KVX, C_T5, C_T6DMA, C_T6, C_KM = 0, 16, 32, 36, 40, 44, 48
WOL = 65536
LDS_BYTES = 163840
XA, WQKV, WOA, XB, WQ, WKV, WOB, OUT, WS = [f's[{4*i+4}:{4*i+7}]' for i in range(9)]
sW, sRB, sHG, sRA, sHP, sTAG, sG, sKQ = 's40', 's41', 's42', 's43', 's44', 's45', 's46', 's47'
SRDB = 's[48:51]'
SPIN_CAP = 400000

L = []
def e(s): L.append('    ' + s)
def lab(s): L.append(s + ':')
def c(s): L.append('    ; ' + s)
_u = [0]
def uid(p):
    _u[0] += 1
    return f'L_{p}{_u[0]}'
nstamp = [0]
def stamp():
    if not DIAG: return
    i = nstamp[0]; nstamp[0] += 1
    e('s_memrealtime s[98:99]'); e('s_memtime s[100:101]'); e('s_waitcnt lgkmcnt(0)')
    e(f'v_writelane_b32 v127, s98, {i}'); e(f'v_writelane_b32 v127, s100, {32+i}')
def vr(a, n=4): return f'v[{a}:{a+n-1}]'
def srd(idx, lo, size):
    b = 4*idx + 4
    e(f's_mov_b32 s{b}, s{lo}'); e(f's_mov_b32 s{b+1}, s{lo+1}'); e(f's_mov_b32 s{b+2}, {hex(size)}'); e(f's_mov_b32 s{b+3}, 0x20000')

def lds_wait(off, target, vt='v120', extra_addr=None):
    l0, l1 = uid('lw'), uid('lwx')
    if extra_addr is None: e(f'v_mov_b32 v121, {CNT+off}')
    e('s_mov_b32 s96, 0')
    lab(l0)
    e(f'ds_read_b32 {vt}, {"v121" if extra_addr is None else extra_addr}' + ('' if extra_addr is None else f' offset:{off}'))
    e('s_add_u32 s96, s96, 1')
    e('s_waitcnt lgkmcnt(0)')
    e(f'v_readfirstlane_b32 s97, {vt}')
    e(f's_cmp_gt_u32 s96, {SPIN_CAP*2}'); e(f's_cbranch_scc1 {l1}')
    e(f's_cmp_ge_u32 s97, {target}'); e(f's_cbranch_scc1 {l1}')
    e('s_sleep 4'); e(f's_branch {l0}')
    lab(l1)
def lds_signal(off, addr=None):
    if addr is None: e(f'v_mov_b32 v121, {CNT+off}')
    e('v_mov_b32 v120, 1')
    e('s_mov_b64 exec, 1')
    e(f'ds_add_u32 {"v121" if addr is None else addr}, v120' + ('' if addr is None else f' offset:{off}'))
    e('s_mov_b64 exec, -1')
def poll_flags(vaddr, nlanes, vt='v120', width=1):
    l0, l1 = uid('pf'), uid('pfx')
    if nlanes < 64: e(f's_mov_b64 exec, {hex((1 << nlanes) - 1)}')
    e('s_mov_b32 s96, 0')
    lab(l0)
    n = int(vt[1:])
    if width == 1: e(f'buffer_load_dword {vt}, {vaddr}, {WS}, 0 offen sc1')
    else: e(f'buffer_load_dwordx2 v[{n}:{n+1}], {vaddr}, {WS}, 0 offen sc1')
    e('s_add_u32 s96, s96, 1')
    e('s_waitcnt vmcnt(0)')
    e(f'v_cmp_ne_u32 vcc, {sTAG}, {vt}')
    e(f's_cmp_gt_u32 s96, {SPIN_CAP}'); e(f's_cbranch_scc1 {l1}')
    e('s_cmp_eq_u64 vcc, 0'); e(f's_cbranch_scc1 {l1}')
    e('s_sleep 8'); e(f's_branch {l0}')
    lab(l1)
    if nlanes < 64: e('s_mov_b64 exec, -1')
def flag_store(soff, v2=None):
    e('v_mov_b32 v121, 0')
    e(f'v_mov_b32 v122, {sTAG}')
    if v2: e(f'v_mov_b32 v123, {v2}')
    e('s_mov_b64 exec, 1')
    if v2: e(f'buffer_store_dwordx2 v[122:123], v121, {WS}, {soff} offen sc1')
    else: e(f'buffer_store_dword v122, v121, {WS}, {soff} offen sc1')
    e('s_mov_b64 exec, -1')

lab(NAME + '_kernel')
e('s_cmp_ge_u32 s2, 256'); e('s_cbranch_scc1 L_end')
e('s_load_dwordx16 s[64:79], s[0:1], 0')
e('s_load_dwordx2 s[80:81], s[0:1], 64')
e('s_load_dwordx2 s[82:83], s[0:1], 80')
e('v_lshrrev_b32 v1, 6, v0')
e('v_and_b32 v0, 63, v0')
if DIAG: e('v_mov_b32 v127, 0')
e(f'v_readfirstlane_b32 {sW}, v1')
e(f's_and_b32 {sRB}, s2, 31'); e(f's_lshr_b32 {sHG}, s2, 5'); e(f's_lshr_b32 {sRA}, {sRB}, 1')
e(f's_lshl_b32 {sHP}, {sHG}, 1'); e('s_and_b32 s52, s2, 1'); e(f's_add_u32 {sHP}, {sHP}, s52')
e(f's_and_b32 {sG}, {sW}, 3'); e(f's_lshr_b32 {sKQ}, {sW}, 2')
c('KV-proj lane offsets')
e('v_and_b32 v2, 15, v0'); e('v_lshrrev_b32 v3, 4, v0')
e('v_lshlrev_b32 v4, 10, v2'); e('v_lshl_add_u32 v4, v3, 4, v4')
e('v_lshlrev_b32 v5, 4, v0')
e(f's_lshl_b32 s52, {sRB}, 16'); e(f's_lshr_b32 s53, {sHG}, 1'); e('s_lshl_b32 s54, s53, 14'); e('s_add_u32 s52, s52, s54')
e(f's_lshl_b32 s54, {sW}, 6'); e('s_add_u32 s52, s52, s54')
e(f's_lshl_b32 s55, {sW}, 10')
e(f's_add_u32 m0, s55, {KVS}')
e(f's_bitcmp1_b32 {sHG}, 0')
e('s_waitcnt lgkmcnt(0)')
e('s_cselect_b32 s24, s76, s74'); e('s_cselect_b32 s25, s77, s75'); e('s_mov_b32 s26, 0x4000'); e('s_mov_b32 s27, 0x20000')
srd(3, 70, 0x200000)
e(f'buffer_load_dwordx4 v5, {WKV}, s55 offen lds')
e(f'buffer_load_dwordx4 v[80:83], v4, {XB}, s52 offen')
e(f's_load_dword {sTAG}, s[82:83], {GEN}')
stamp()
srd(0, 64, 0x200000); srd(1, 66, 0x180000); srd(4, 72, 0x80000)
c('ring DMA parameters')
e('v_lshrrev_b32 v6, 3, v0'); e('v_and_b32 v7, 7, v0')
e(f's_lshl_b32 s56, {sW}, 3'); e('v_add_u32 v6, s56, v6')
e('v_bfe_u32 v8, v6, 1, 3'); e('v_xor_b32 v7, v7, v8')
e('v_lshlrev_b32 v10, 10, v6'); e('v_lshl_add_u32 v10, v7, 4, v10')
e('v_lshrrev_b32 v6, 2, v0'); e('v_and_b32 v7, 3, v0'); e('v_lshlrev_b32 v7, 4, v7')
e('v_lshl_add_u32 v13, v6, 10, v7')
e('v_mul_u32_u24 v12, 3072, v6'); e('v_add_u32 v12, v12, v7')
e(f's_cmp_lt_u32 {sW}, 8')
e('s_cselect_b32 s48, s70, s72'); e('s_cselect_b32 s49, s71, s73'); e('s_cselect_b32 s50, s18, s22'); e('s_mov_b32 s51, 0x20000')
e('s_cselect_b64 vcc, -1, 0')
e('s_cselect_b32 s57, 7, 16'); e('s_lshl_b32 s57, 1, s57')
e(f's_lshl_b32 s58, {sRB}, 16')
e(f's_lshl_b32 s59, {sG}, 14'); e(f's_lshl_b32 s60, {sHG}, 7'); e('s_add_u32 s59, s59, s60')
e(f's_and_b32 s60, {sKQ}, 1'); e('s_lshl_b32 s61, s60, 6'); e('s_add_u32 s59, s59, s61')
e('s_lshl_b32 s60, s60, 12'); e(f's_lshl_b32 s61, {sG}, 10'); e('s_add_u32 s60, s60, s61'); e(f's_add_u32 s60, s60, {WREG + 3*4096}')
e('s_add_u32 s62, s55, 16384')
e(f's_cmp_lt_u32 {sW}, 8')
e('s_cselect_b32 s58, s58, s59')
e('s_cselect_b32 s59, s62, s60')
e('v_cndmask_b32 v11, v13, v10, vcc')
e(f's_lshl_b32 s60, {sRA}, 17')
e(f's_mul_i32 s61, {sG}, {16*3072}'); e(f's_lshl_b32 s62, {sKQ}, 10'); e('s_add_u32 s61, s61, s62')
e(f's_lshl_b32 s62, {sHP}, 6'); e('s_add_u32 s61, s61, s62')
e(f's_add_u32 s84, s55, {WREG}'); e(f's_add_u32 s85, s55, {WREG+SLOT}'); e(f's_add_u32 s86, s55, {WREG+2*SLOT}')
e(f's_cmp_lt_u32 {sW}, 12')
e('s_cselect_b32 s61, s61, 0x7f000000')
e(f's_cselect_b32 s84, s84, {DUMMY}'); e(f's_cselect_b32 s85, s85, {DUMMY}'); e(f's_cselect_b32 s86, s86, {DUMMY}')
e(f's_lshr_b32 s62, {sRB}, 3'); e('s_lshl_b32 s62, s62, 1'); e(f's_add_u32 s63, {sHG}, {sRB}'); e('s_add_u32 s63, s63, s62'); e('s_and_b32 s63, s63, 7')

def issue_chunk(i):
    sb = (i % 3) * SLOT
    e('s_lshl_b32 s87, s63, 7'); e('s_add_u32 s87, s87, s60')
    e(f's_add_u32 m0, s55, {sb}')
    e('s_mul_i32 s88, s63, s57')
    e(f'buffer_load_dwordx4 v10, {XA}, s87 offen lds')
    e('s_add_u32 s88, s88, s58')
    e(f's_add_u32 m0, s59, {sb}')
    e(f's_mul_i32 s89, s63, {64*3072}')
    e(f'buffer_load_dwordx4 v11, {SRDB}, s88 offen lds')
    e('s_add_u32 s89, s89, s61')
    e(f's_mov_b32 m0, s{84 + i % 3}')
    e('s_add_u32 s63, s63, 1')
    e(f'buffer_load_dwordx4 v12, {WQKV}, s89 offen lds')
    e('s_and_b32 s63, s63, 7')

issue_chunk(0)
srd(2, 68, 0x80000); srd(6, 78, 0x80000); srd(7, 80, 0x400000); srd(8, 82, WS_BYTES)
c('zero LDS counters (every wave writes the same zeros)')
e('v_mov_b32 v6, 0'); e(f'v_lshlrev_b32 v7, 2, v0'); e(f'v_add_u32 v7, {CNT}, v7'); e('ds_write_b32 v7, v6')
c('GEMM read addresses')
e('v_and_b32 v6, 31, v0'); e('v_lshrrev_b32 v7, 5, v0')
e(f's_lshr_b32 s87, {sG}, 1'); e('s_add_u32 s87, s87, 4'); e(f's_and_b32 s88, {sG}, 1'); e('s_add_u32 s88, s88, 3'); e(f's_sub_u32 s89, {sKQ}, 1')
e(f's_cmp_lt_u32 {sW}, 4')
e(f's_cselect_b32 s87, s87, {sG}'); e('s_cselect_b32 s88, s88, s89')
e('s_lshl_b32 s87, s87, 12'); e('s_lshl_b32 s88, s88, 12'); e(f's_add_u32 s88, s88, {WREG}')
e('v_bfe_u32 v8, v6, 1, 3'); e('v_xor_b32 v8, v8, v7')
e('v_lshlrev_b32 v9, 7, v6')
for j in range(4):
    e(f'v_xor_b32 v{16+j}, {2*j}, v8'); e(f'v_lshl_add_u32 v{112+j}, v{16+j}, 4, v9'); e(f'v_add_u32 v{16+j}, s87, v{112+j}')
    e(f'v_add_u32 v{22+j}, {2*SLOT}, v{16+j}')
e('v_bfe_u32 v14, v0, 2, 2'); e('v_lshl_add_u32 v14, v7, 3, v14'); e('v_lshlrev_b32 v14, 6, v14')
e('v_bfe_u32 v15, v0, 4, 1'); e('v_lshl_add_u32 v14, v15, 5, v14'); e('v_and_b32 v15, 3, v0'); e('v_lshl_add_u32 v116, v15, 3, v14')
e('v_add_u32 v20, s88, v116'); e(f'v_add_u32 v26, {2*SLOT}, v20')
c('accumulator init: 1e-6 for A q/k tiles else 0')
e(f's_sub_u32 s87, {sW}, 4'); e('s_cmp_lt_u32 s87, 8'); e(f's_cselect_b32 s87, {f32(1e-6)}, 0')
for r in range(16): e(f'v_mov_b32 v{32+r}, s87')
c('KV-proj')
e('v_lshlrev_b32 v6, 8, v3'); e('v_lshl_add_u32 v6, v2, 3, v6'); e(f's_add_u32 s87, s55, {KVS}'); e('v_add_u32 v6, s87, v6')
e('v_add_u32 v7, s87, v5')
e('s_waitcnt vmcnt(3)')
e('ds_read_b64_tr_b16 v[84:85], v6'); e('ds_read_b64_tr_b16 v[86:87], v6 offset:128')
e(f's_bitcmp1_b32 {sHG}, 0')
e('s_waitcnt lgkmcnt(0)')
e('s_cbranch_scc1 L_kvV')
e('v_mfma_f32_16x16x32_bf16 v[88:91], v[84:87], v[80:83], 0'); e('s_branch L_kvJ')
lab('L_kvV'); e('v_mfma_f32_16x16x32_bf16 v[88:91], v[80:83], v[84:87], 0')
lab('L_kvJ')
e(f's_mul_i32 {sTAG}, {sTAG}, 0x9E3779B1'); e(f's_add_u32 {sTAG}, {sTAG}, 0x7F4A7C15')
e('s_nop 5')
e('ds_write_b128 v7, v[88:91]')
e('s_waitcnt lgkmcnt(0)')
e('s_barrier')
stamp()
e(f's_cmp_lg_u32 {sW}, 15'); e('s_cbranch_scc1 L_gemm0')
c('wave 15: reduce 16 partials, store K/V fragment')
e(f'v_add_u32 v7, {KVS}, v5')
for i in range(16): e(f'ds_read_b128 {vr(48+4*i)}, v7 offset:{1024*i}')
e(f's_lshl_b32 s87, {sRB}, 2'); e('s_add_u32 s87, s87, s53')
e('s_lshr_b32 s88, s87, 1'); e('s_lshl_b32 s88, s88, 10'); e('s_and_b32 s89, s87, 1'); e('s_lshl_b32 s89, s89, 8'); e('s_add_u32 s88, s88, s89'); e(f's_add_u32 s88, s88, {KF}')
e('s_lshl_b32 s89, s87, 9'); e(f's_add_u32 s89, s89, {VF}')
e('v_and_b32 v6, 1, v3'); e('v_lshrrev_b32 v8, 1, v3')
e('v_lshlrev_b32 v14, 9, v6'); e('v_lshl_add_u32 v14, v8, 3, v14')
e('v_lshlrev_b32 v15, 8, v8'); e('v_lshl_add_u32 v15, v6, 3, v15')
e(f's_bitcmp1_b32 {sHG}, 0')
e('s_cselect_b32 s88, s89, s88'); e('s_cselect_b64 vcc, -1, 0')
e('v_cndmask_b32 v14, v14, v15, vcc'); e('v_lshl_add_u32 v14, v2, 4, v14')
for lvl, cnt in ((8, 8), (4, 0), (2, 0), (1, 0)):
    if lvl == 8:
        for i in range(8):
            if i % 2 == 0: e(f's_waitcnt lgkmcnt({12 - 2*i if 12-2*i > 0 else 0})')
            a, b = 48 + 8*i, 52 + 8*i
            e(f'v_pk_add_f32 {vr(a,2)}, {vr(a,2)}, {vr(b,2)}'); e(f'v_pk_add_f32 {vr(a+2,2)}, {vr(a+2,2)}, {vr(b+2,2)}')
    else:
        st = 64 // lvl
        for i in range(lvl):
            a, b = 48 + st*i, 48 + st*i + st//2
            e(f'v_pk_add_f32 {vr(a,2)}, {vr(a,2)}, {vr(b,2)}'); e(f'v_pk_add_f32 {vr(a+2,2)}, {vr(a+2,2)}, {vr(b+2,2)}')
e('v_cvt_pk_bf16_f32 v52, v48, v49'); e('v_cvt_pk_bf16_f32 v53, v50, v51')
e(f'buffer_store_dwordx2 v[52:53], v14, {WS}, s88 offen sc1')
c('max |k|^2 over the 16 keys (0 for V producers)')
e('v_mul_f32 v54, v48, v48'); e('v_fmac_f32 v54, v49, v49'); e('v_fmac_f32 v54, v50, v50'); e('v_fmac_f32 v54, v51, v51')
e('v_mov_b32 v55, v54'); e('s_nop 1'); e('v_permlane32_swap_b32 v54, v55'); e('v_add_f32 v54, v54, v55')
e('v_mov_b32 v55, v54'); e('s_nop 1'); e('v_permlane16_swap_b32 v54, v55'); e('v_add_f32 v54, v54, v55')
for sh in (8, 4, 2, 1):
    e('s_nop 1'); e(f'v_max_f32_dpp v54, v54, v54 row_ror:{sh} row_mask:0xf bank_mask:0xf')
e('v_cndmask_b32 v117, v54, 0, vcc')
lab('L_gemm0')
issue_chunk(1); issue_chunk(2)
for i in range(8):
    e(f's_waitcnt vmcnt({6 if i == 0 else 3 if i < 7 else 0})')
    e('s_barrier')
    if 1 <= i <= 5: issue_chunk(i + 2)
    s = i % 3
    xa, wa, off = (16, 20, s*SLOT) if s < 2 else (22, 26, 0)
    for j in range(4):
        e(f'ds_read_b128 {vr(48+4*j)}, v{xa+j} offset:{off}')
        e(f'ds_read_b64_tr_b16 {vr(64+4*j,2)}, v{wa} offset:{off + 1024*j}')
        e(f'ds_read_b64_tr_b16 {vr(66+4*j,2)}, v{wa} offset:{off + 1024*j + 256}')
    ln, lj = uid('gn'), uid('gj')
    e(f's_cmp_ge_u32 {sW}, 8'); e(f's_cbranch_scc1 {ln}')
    for j in range(4):
        e(f's_waitcnt lgkmcnt({9-3*j})')
        e(f'v_mfma_f32_32x32x16_bf16 v[32:47], {vr(64+4*j)}, {vr(48+4*j)}, v[32:47]')
    e(f's_branch {lj}')
    lab(ln)
    for j in range(4):
        e(f's_waitcnt lgkmcnt({9-3*j})')
        e(f'v_mfma_f32_32x32x16_bf16 v[32:47], {vr(48+4*j)}, {vr(64+4*j)}, v[32:47]')
    lab(lj)
    if i == 0:
        e(f's_cmp_lg_u32 {sW}, 15'); e('s_cbranch_scc1 L_nf1')
        e('s_waitcnt vmcnt(6)')
        e('s_lshl_b32 s87, s2, 4'); e(f's_add_u32 s87, s87, {F1}')
        flag_store('s87', 'v117')
        lab('L_nf1')
stamp()
e('s_nop 7')
c('fragment exchange address: region + g*2048 + lane*16')
e(f's_lshl_b32 s90, {sG}, 11'); e('v_add_u32 v118, s90, v5')
e(f's_cmp_eq_u32 {sKQ}, 0'); e('s_cbranch_scc1 L_postQ')
e(f's_cmp_eq_u32 {sKQ}, 3'); e('s_cbranch_scc1 L_postV')
c('phi on q / k tiles')
e(f's_mov_b32 s87, {f32(1.4426950408889634)}')
for r in range(16): e(f'v_mul_f32 v{48+r}, s87, v{32+r}')
for r in range(16): e(f'v_exp_f32_e64 v{48+r}, v{48+r} clamp')
for r in range(16): e(f'v_max_f32 v{32+r}, {f32(1e-6)}, v{32+r}')
for r in range(16): e(f'v_add_f32 v{32+r}, v{32+r}, v{48+r}')
for r in range(8): e(f'v_cvt_pk_bf16_f32 v{48+r}, v{32+2*r}, v{33+2*r}')
e(f's_cmp_eq_u32 {sKQ}, 1'); e(f's_cselect_b32 s87, {PQ}, {PK}'); e('v_add_u32 v6, s87, v118')
e('ds_write_b128 v6, v[48:51]'); e('ds_write_b128 v6, v[52:55] offset:1024')
e('s_branch L_postJ')
lab('L_postV')
for r in range(8): e(f'v_cvt_pk_bf16_f32 v{48+r}, v{32+2*r}, v{33+2*r}')
e(f'ds_write_b128 v118, v[48:51] offset:{VV}'); e(f'ds_write_b128 v118, v[52:55] offset:{VV+1024}')
c('poll F1')
e(f's_lshl_b32 s87, {sG}, 10'); e(f's_add_u32 s87, s87, {F1}'); e('v_add_u32 v6, s87, v5')
poll_flags('v6', 64, 'v56', 2)
e(f'v_mov_b32 v6, {CNT + C_KM}'); e('ds_max_u32 v6, v57')
e('s_branch L_postJ')
lab('L_postQ')
e(f's_mov_b32 s87, {f32(0.25*1.4426950408889634)}')
for r in range(16): e(f'v_mul_f32 v{32+r}, s87, v{32+r}')
for r in range(8): e(f'v_cvt_pk_bf16_f32 v{48+r}, v{32+2*r}, v{33+2*r}')
e(f'v_add_u32 v6, {QX}, v118')
e('ds_write_b128 v6, v[48:51]'); e('ds_write_b128 v6, v[52:55] offset:1024')
e('v_mul_f32 v56, v32, v32'); e('v_mul_f32 v57, v40, v40')
for r in range(1, 8): e(f'v_fmac_f32 v56, v{32+r}, v{32+r}'); e(f'v_fmac_f32 v57, v{40+r}, v{40+r}')
e('v_mov_b32 v58, v56'); e('v_mov_b32 v59, v57'); e('s_nop 1')
e('v_permlane32_swap_b32 v56, v58'); e('v_permlane32_swap_b32 v57, v59')
e('v_add_f32 v56, v56, v58'); e('v_add_f32 v57, v57, v59'); e('v_max_f32 v56, v56, v57')
e(f's_lshl_b32 s87, {sG}, 8'); e(f's_add_u32 s87, s87, {QN}'); e('v_lshlrev_b32 v6, 2, v0'); e('v_add_u32 v6, s87, v6'); e('ds_write_b32 v6, v56')
lab('L_postJ')
e('s_waitcnt lgkmcnt(0)')
e('s_barrier')
stamp()
c('kv partial: waves 12,13 (head 0,1)')
e(f's_sub_u32 s87, {sW}, 12'); e('s_cmp_gt_u32 s87, 1'); e('s_cbranch_scc1 L_nokv')
e('s_setprio 3')
for i in range(8): e(f'ds_read_b128 {vr(48+4*i)}, v5 offset:{PK + 1024*i}')
for i in range(8): e(f'ds_read_b128 {vr(80+4*i)}, v5 offset:{VV + 1024*i}')
e('s_mov_b32 s88, 0xffff0000'); e('s_mov_b32 s89, 0x0000ffff'); e('s_cmp_eq_u32 s87, 0'); e('s_cselect_b32 s88, s88, s89'); e('s_mov_b32 s89, s88')
e('s_waitcnt lgkmcnt(0)')
e('s_mov_b64 exec, s[88:89]')
for r in range(32): e(f'v_mov_b32 v{80+r}, 0x3f803f80')
e('s_mov_b64 exec, -1')
e('s_nop 0')
for i in range(8): e(f'v_mfma_f32_32x32x16_bf16 v[32:47], {vr(48+4*i)}, {vr(80+4*i)}, ' + ('0' if i == 0 else 'v[32:47]'))
e(f's_lshl_b32 s88, {sHP}, 4'); e(f's_add_u32 s88, s88, {sRA}'); e('s_lshl_b32 s88, s88, 12'); e('s_lshl_b32 s89, s87, 11'); e('s_add_u32 s88, s88, s89'); e(f's_add_u32 s88, s88, {PART}')
e(f's_lshl_b32 s89, {sHP}, 1'); e('s_add_u32 s89, s89, s87'); e('s_lshl_b32 s89, s89, 4'); e(f's_add_u32 s89, s89, {sRA}'); e('s_lshl_b32 s89, s89, 4'); e(f's_add_u32 s89, s89, {F2}')
e('s_cmp_eq_u32 s87, 0'); e('s_cbranch_scc0 L_kvh1')
e(f'buffer_store_dwordx4 v[32:35], v5, {WS}, s88 offen sc1'); e(f'buffer_store_dwordx4 v[36:39], v5, {WS}, s88 offen offset:1024 sc1')
e('s_branch L_kvh2')
lab('L_kvh1')
e(f'buffer_store_dwordx4 v[40:43], v5, {WS}, s88 offen sc1'); e(f'buffer_store_dwordx4 v[44:47], v5, {WS}, s88 offen offset:1024 sc1')
lab('L_kvh2')
e('s_waitcnt vmcnt(0)')
flag_store('s89')
e('s_setprio 0')
lab('L_nokv')
c('generation update: WG0 wave 14')
e(f's_cmp_lg_u32 {sW}, 14'); e('s_cbranch_scc1 L_nogen'); e('s_cmp_lg_u32 s2, 0'); e('s_cbranch_scc1 L_nogen')
e(f's_mov_b32 s87, {GEN}'); flag_store('s87')
lab('L_nogen')

Q0, Q1, CC, O0, O1, SA, SB, K0, K1, V0, V1 = 4, 8, 12, 28, 44, 60, 76, 92, 96, 100, 108
vKO, vVO, vIDX = 'v1', 'v2', 'v3'
c('save persistent lane constants')
for j in range(4): e(f'v_mov_b32 v{122+j}, v{112+j}') if False else None
e('v_mov_b32 v119, v5')
e(f'v_add_u32 v6, {QX}, v118')
e(f's_lshl_b32 s87, {sG}, 8'); e(f's_add_u32 s87, s87, {QN}'); e('v_lshlrev_b32 v7, 2, v0'); e('v_add_u32 v7, s87, v7')
e(f'v_mov_b32 v13, {CNT + C_KM}')
e('ds_read_b32 v60, v7'); e('ds_read_b32 v61, v13')
e('v_mov_b32 v62, v6')
e(f'ds_read_b128 {vr(Q0)}, v62'); e(f'ds_read_b128 {vr(Q1)}, v62 offset:1024')
e(f's_lshl_b32 s87, {sKQ}, 14')
e(f's_add_u32 s88, s87, {KF}'); e(f'v_add_u32 {vKO}, s88, v119')
e('v_lshrrev_b32 v63, 5, v0'); e('v_lshlrev_b32 v63, 8, v63'); e('v_and_b32 v64, 15, v0'); e('v_lshl_add_u32 v63, v64, 4, v63')
e(f's_add_u32 s88, s87, {VF}'); e(f'v_add_u32 {vVO}, s88, v63')
e(f'v_mov_b32 {vIDX}, 0xdddddddd')
e('s_mov_b32 s92, 0x0000ffff'); e('s_mov_b32 s93, 0x0000ffff')
e('s_mov_b32 s91, 0x3fff')
e('s_lshr_b32 s94, s2, 3'); e('s_and_b32 s94, s94, 15'); e('s_lshl_b32 s94, s94, 10')
e('s_mov_b32 s90, 8')
e('s_mov_b32 s85, 0')
e(f's_cmp_eq_u32 {sKQ}, 0'); e('s_cbranch_scc0 L_p1'); e('s_setprio 3'); lab('L_p1')
e(f's_cmp_eq_u32 {sKQ}, 1'); e('s_cbranch_scc0 L_p2'); e('s_setprio 2'); lab('L_p2')
e(f's_cmp_eq_u32 {sKQ}, 2'); e('s_cbranch_scc0 L_p3'); e('s_setprio 1'); lab('L_p3')
e('s_waitcnt lgkmcnt(0)')
e('v_mul_f32 v60, v60, v61'); e('v_sqrt_f32 v60, v60'); e(f'v_mov_b32 v61, {f32(40.0)}'); e(f's_mov_b32 s87, {f32(-1.02)}')
e('v_fma_f32 v60, v60, s87, v61')
for r in range(16): e(f'v_mov_b32 v{CC+r}, v60')
lab('L_attn')
c('attention pass: s94 = start offset, s91 = mask, s90 = iterations')
def adv(s): e(f's_add_u32 {s}, {s}, 1024'); e(f's_and_b32 {s}, {s}, s91')
def loadK(buf): e(f'buffer_load_dwordx4 {vr(buf)}, {vKO}, {WS}, s94 offen sc1'); adv('s94')
def loadV(buf):
    e('s_mov_b64 exec, s[92:93]')
    e(f'buffer_load_dwordx4 {vr(buf)}, {vVO}, {WS}, s95 offen sc1')
    e(f'buffer_load_dwordx4 {vr(buf+4)}, {vVO}, {WS}, s95 offen offset:512 sc1')
    e('s_mov_b64 exec, -1'); adv('s95')
for r in range(16): e(f'v_mov_b32 v{V0+r}, 0x3f803f80')
e('s_mov_b32 s95, s94')
loadK(K0); loadV(V0); loadK(K1)
for r in range(32): e(f'v_mov_b32 v{O0+r}, 0')
for r in range(8): e(f'v_mov_b32 v{SB+8+r}, 0')
e('s_waitcnt vmcnt(3)')
def QK(s, k, q): e(f'v_mfma_f32_32x32x16_bf16 {vr(s,16)}, {vr(k)}, {vr(q)}, {vr(CC,16)}')
def SM(o, v, s): e(f'v_smfmac_f32_32x32x32_bf16 {vr(o,16)}, {vr(v)}, {vr(s,8)}, {vIDX}')
def EX(s, a, b):
    for r in range(a, b): e(f'v_exp_f32 v{s+r}, v{s+r}')
QK(SA, K0, Q0)
e('s_nop 11')
stamp()
L.append('.p2align 4')
lab('L_loop')
for (kc, kn, vc, vn) in ((K0, K1, V0, V1), (K1, K0, V1, V0)):
    EX(SA, 0, 2)
    SM(O1, vn+4, SB+8)
    loadV(vn)
    EX(SA, 2, 5)
    QK(SB, kc, Q1)
    loadK(kc)
    EX(SA, 5, 10)
    e('s_waitcnt vmcnt(3)')
    SM(O0, vc, SA)
    EX(SA, 10, 16)
    EX(SB, 0, 2)
    SM(O0, vc+4, SA+8)
    EX(SB, 2, 5)
    QK(SA, kn, Q0)
    EX(SB, 5, 10)
    SM(O1, vc, SB)
    if kc == K1: e('s_sub_u32 s90, s90, 1'); e('s_cmp_lg_u32 s90, 0')
    EX(SB, 10, 16)
e('s_cbranch_scc1 L_loop')
e('s_nop 0')
SM(O1, V1+4, SB+8)
e('s_waitcnt vmcnt(0)')
stamp()
e('s_cmp_lg_u32 s85, 0'); e('s_cbranch_scc1 L_fbret')
c('arrival ticket')
e(f's_lshl_b32 s87, {sG}, 2'); e(f's_add_u32 s87, s87, {CNT}'); e('v_mov_b32 v117, s87')
e('v_mov_b32 v120, 1'); e('s_mov_b64 exec, 1'); e(f'ds_add_rtn_u32 v121, v117, v120 offset:{C_TICKET}'); e('s_mov_b64 exec, -1')
e(f's_mul_i32 s87, {sG}, 4608'); e(f's_add_u32 s87, s87, {OSUM}'); e('v_add_u32 v92, s87, v119')
e('v_lshlrev_b32 v93, 2, v0'); e('s_add_u32 s87, s87, 4096'); e('v_add_u32 v93, s87, v93')
e('s_waitcnt lgkmcnt(0)')
e('v_readfirstlane_b32 s84, v121')
e('s_nop 4')
e('s_cmp_eq_u32 s84, 0'); e('s_cbranch_scc1 L_first')
lds_wait(C_DONE, 's84', extra_addr='v117')
for i in range(4): e(f'ds_read_b128 {vr(60+4*i)}, v92 offset:{1024*i}')
e('ds_read2st64_b32 v[76:77], v93 offset0:0 offset1:1')
e('s_waitcnt lgkmcnt(0)')
for r in range(4): e(f'v_pk_add_f32 {vr(O0+2*r,2)}, {vr(O0+2*r,2)}, {vr(60+2*r,2)}')
for r in range(4): e(f'v_pk_add_f32 {vr(O1+2*r,2)}, {vr(O1+2*r,2)}, {vr(68+2*r,2)}')
e(f'v_add_f32 v{O0+8}, v{O0+8}, v76'); e(f'v_add_f32 v{O1+8}, v{O1+8}, v77')
e('s_cmp_eq_u32 s84, 3'); e('s_cbranch_scc1 L_last')
lab('L_first')
e(f'ds_write_b128 v92, {vr(O0)}'); e(f'ds_write_b128 v92, {vr(O0+4)} offset:1024')
e(f'ds_write_b128 v92, {vr(O1)} offset:2048'); e(f'ds_write_b128 v92, {vr(O1+4)} offset:3072')
e(f'ds_write2st64_b32 v93, v{O0+8}, v{O1+8} offset0:0 offset1:1')
e('s_waitcnt lgkmcnt(0)')
lds_signal(C_DONE, 'v117')
e('s_branch L_role')
lab('L_last')
c('safety check of the stand-in max: row sums must not have underflowed')
e(f'v_min_f32 v60, v{O0+8}, v{O1+8}'); e(f's_mov_b32 s87, {f32(2.0**-50)}')
e('v_cmp_nge_f32 vcc, v60, s87') if False else e('v_cmp_nle_f32 vcc, s87, v60')
e('s_nop 1'); e('s_cmp_lg_u64 vcc, 0'); e('s_cbranch_scc1 L_fallback')
lab('L_norm')
e(f'v_rcp_f32 v60, v{O0+8}'); e(f'v_rcp_f32 v61, v{O1+8}')
def norm_store(n0, r0, n1, r1, soff):
    for r in range(8): e(f'v_mul_f32 v{n0+r}, v{n0+r}, {r0}')
    for r in range(8): e(f'v_mul_f32 v{n1+r}, v{n1+r}, {r1}')
    for r in range(4): e(f'v_cvt_pk_bf16_f32 v{64+r}, v{n0+2*r}, v{n0+2*r+1}')
    for r in range(4): e(f'v_cvt_pk_bf16_f32 v{68+r}, v{n1+2*r}, v{n1+2*r+1}')
    e('v_and_b32 v62, 31, v0'); e('v_lshlrev_b32 v62, 6, v62'); e('v_lshrrev_b32 v63, 5, v0'); e('v_lshl_add_u32 v62, v63, 4, v62')
    e('v_permlane32_swap_b32 v64, v66'); e('v_permlane32_swap_b32 v65, v67')
    e('v_permlane32_swap_b32 v68, v70'); e('v_permlane32_swap_b32 v69, v71')
    e(f'buffer_store_dwordx4 v[64:67], v62, {WS}, {soff} offen sc1')
    e(f'buffer_store_dwordx4 v[68:71], v62, {WS}, {soff} offen offset:32 sc1')
e(f's_lshl_b32 s87, {sHG}, 1'); e(f's_and_b32 s88, {sG}, 1'); e('s_add_u32 s87, s87, s88')
e(f's_lshr_b32 s88, {sG}, 1')
e('s_lshl_b32 s89, s87, 17'); e(f's_lshl_b32 s86, {sRB}, 12'); e('s_add_u32 s89, s89, s86'); e('s_lshl_b32 s86, s88, 11'); e('s_add_u32 s89, s89, s86'); e(f's_add_u32 s89, s89, {OB}')
e(f's_lshl_b32 s86, {sRB}, 4'); e('s_add_u32 s86, s86, s87'); e('s_lshl_b32 s86, s86, 1'); e('s_add_u32 s86, s86, s88'); e('s_lshl_b32 s86, s86, 4'); e(f's_add_u32 s86, s86, {F4}')
norm_store(O0, 'v60', O1, 'v61', 's89')
e('s_waitcnt vmcnt(0)')
flag_store('s86')
lab('L_role')
stamp()
e(f's_cmp_eq_u32 {sKQ}, 1'); e('s_cbranch_scc1 L_T6')
e(f's_cmp_eq_u32 {sKQ}, 2'); e('s_cbranch_scc1 L_WOB')
e(f's_cmp_eq_u32 {sKQ}, 3'); e('s_cbranch_scc1 L_tail')
c('T5: reduce kv partial quad g, build o_A for row tile g')
e(f's_lshl_b32 s87, {sHP}, 1'); e(f's_lshr_b32 s88, {sG}, 1'); e('s_add_u32 s87, s87, s88'); e('s_lshl_b32 s87, s87, 8'); e(f's_add_u32 s87, s87, {F2}')
e('v_add_u32 v4, s87, v119')
poll_flags('v4', 16)
e(f's_lshl_b32 s87, {sHP}, 16'); e(f's_lshl_b32 s88, {sG}, 10'); e('s_add_u32 s87, s87, s88'); e(f's_add_u32 s87, s87, {PART}')
for i in range(16):
    e(f'buffer_load_dwordx4 {vr(48+4*i)}, v119, {WS}, s87 offen sc1')
    if i < 15: e('s_add_u32 s87, s87, 4096')
e(f'v_add_u32 v4, {PQ}, v118')
e('ds_read_b128 v[8:11], v4'); e('ds_read_b128 v[12:15], v4 offset:1024')
for i in range(8):
    e(f's_waitcnt vmcnt({14-2*i})')
    a, b = 48 + 8*i, 52 + 8*i
    e(f'v_pk_add_f32 {vr(a,2)}, {vr(a,2)}, {vr(b,2)}'); e(f'v_pk_add_f32 {vr(a+2,2)}, {vr(a+2,2)}, {vr(b+2,2)}')
for lvl in (4, 2, 1):
    st = 64 // lvl
    for i in range(lvl):
        a, b = 48 + st*i, 48 + st*i + st//2
        e(f'v_pk_add_f32 {vr(a,2)}, {vr(a,2)}, {vr(b,2)}'); e(f'v_pk_add_f32 {vr(a+2,2)}, {vr(a+2,2)}, {vr(b+2,2)}')
e('v_cvt_pk_bf16_f32 v52, v48, v49'); e('v_cvt_pk_bf16_f32 v53, v50, v51')
e(f's_lshr_b32 s88, {sG}, 1'); e('s_lshl_b32 s88, s88, 10'); e(f's_and_b32 s89, {sG}, 1'); e('s_lshl_b32 s89, s89, 3'); e('s_add_u32 s88, s88, s89'); e(f's_add_u32 s88, s88, {KVX}')
e('v_add_u32 v4, s88, v119'); e('ds_write_b64 v4, v[52:53]')
e('s_waitcnt lgkmcnt(0)')
lds_signal(C_KVX)
lds_wait(C_KVX, 4)
e(f'v_add_u32 v4, {KVX}, v119')
e('ds_read_b128 v[16:19], v4'); e('ds_read_b128 v[20:23], v4 offset:1024')
e('s_waitcnt lgkmcnt(0)')
lds_signal(C_T5)
e('v_mfma_f32_32x32x16_bf16 v[28:43], v[16:19], v[8:11], 0')
e('v_mfma_f32_32x32x16_bf16 v[44:59], v[20:23], v[12:15], 0')
e(f's_lshl_b32 s89, {sHP}, 17'); e(f's_lshl_b32 s86, {sRA}, 13'); e('s_add_u32 s89, s89, s86'); e(f's_lshl_b32 s86, {sG}, 11'); e('s_add_u32 s89, s89, s86'); e(f's_add_u32 s89, s89, {OA}')
e(f's_lshl_b32 s86, {sRA}, 1'); e(f's_lshr_b32 s88, {sG}, 1'); e('s_add_u32 s86, s86, s88'); e('s_lshl_b32 s86, s86, 4'); e(f's_add_u32 s86, s86, {sHP}')
e('s_lshl_b32 s86, s86, 1'); e(f's_and_b32 s88, {sG}, 1'); e('s_add_u32 s86, s86, s88'); e('s_lshl_b32 s86, s86, 4'); e(f's_add_u32 s86, s86, {F3}')
e(f'v_add_f32 v60, {f32(1e-6)}, v36'); e(f'v_add_f32 v61, {f32(1e-6)}, v44')
e('v_rcp_f32 v60, v60'); e('v_rcp_f32 v61, v61'); e('s_nop 0')
norm_store(28, 'v60', 52, 'v61', 's89')
e('s_waitcnt vmcnt(0)')
flag_store('s86')
e('s_branch L_tail')

def wo_dma(srdname, nper, first):
    e('v_lshrrev_b32 v4, 2, v0'); e('v_and_b32 v5, 3, v0'); e('v_lshlrev_b32 v5, 4, v5'); e('v_lshl_add_u32 v4, v4, 10, v5')
    e(f's_lshr_b32 s87, {first}, 5'); e('s_lshl_b32 s87, s87, 6'); e(f's_lshl_b32 s88, {sHG}, 7'); e('s_add_u32 s87, s87, s88')
    e(f's_and_b32 s88, {first}, 31'); e('s_lshl_b32 s88, s88, 14'); e('s_add_u32 s87, s87, s88')
    e(f's_lshl_b32 s88, {first}, 10'); e(f's_add_u32 s88, s88, {WOL}')
    for i in range(nper):
        e(f's_add_u32 m0, s88, {1024*i}')
        e('s_nop 0')
        e(f'buffer_load_dwordx4 v4, {srdname}, s87 offen lds')
        if i < nper-1: e('s_add_u32 s87, s87, 16384')
def o_voff():
    e('v_lshrrev_b32 v4, 3, v0'); e('v_and_b32 v5, 7, v0'); e('v_lshrrev_b32 v6, 1, v4'); e('v_xor_b32 v5, v5, v6')
    e('v_lshrrev_b32 v6, 2, v5'); e('v_lshlrev_b32 v6, 17, v6'); e('v_lshl_add_u32 v6, v4, 6, v6'); e('v_and_b32 v5, 3, v5'); e('v_lshl_add_u32 v6, v5, 4, v6')
    e('v_xor_b32 v7, 0x20000, v6')
def o_dma(base, npieces, first):
    for i in range(npieces):
        e(f's_add_u32 s87, {first}, {i}')
        e('s_lshr_b32 s88, s87, 3'); e('s_lshl_b32 s88, s88, 18'); e('s_and_b32 s89, s87, 7'); e('s_lshl_b32 s89, s89, 9'); e('s_add_u32 s88, s88, s89'); e('s_add_u32 s88, s88, s84')
        e('s_lshl_b32 m0, s87, 10')
        e('s_nop 0')
        e(f'buffer_load_dwordx4 v{6 + (i & 1)}, {WS}, s88 offen sc1 lds')
lab('L_T6')
e(f's_lshl_b32 s86, {sG}, 4')
wo_dma(WOA, 16, 's86')
e(f's_lshl_b32 s87, {sRB}, 9'); e(f's_lshl_b32 s88, {sG}, 7'); e('s_add_u32 s87, s87, s88'); e(f's_add_u32 s87, s87, {F3}')
e('v_add_u32 v8, s87, v119')
poll_flags('v8', 8)
lds_wait(C_T5, 4)
o_voff()
e(f's_lshl_b32 s84, {sRB}, 12'); e(f's_add_u32 s84, s84, {OA}')
o_dma(OA, 16, 's86')
e('s_waitcnt vmcnt(0)')
lds_signal(C_T6DMA)
lds_wait(C_T6DMA, 4)
e('s_mov_b32 s85, 0')
e('s_branch L_outgemm')
lab('L_T6ret')
lds_signal(C_T6)
e('s_branch L_tail')
lab('L_WOB')
lds_wait(C_T6, 4)
e(f's_lshl_b32 s86, {sG}, 4')
wo_dma(WOB, 16, 's86')
lab('L_tail')
stamp()
e('s_waitcnt lgkmcnt(0)')
e('s_barrier')
stamp()
e(f's_lshl_b32 s87, {sRB}, 9'); e(f's_lshr_b32 s88, {sW}, 1'); e('s_lshl_b32 s88, s88, 6'); e('s_add_u32 s87, s87, s88')
e(f's_and_b32 s88, {sW}, 1'); e('s_lshl_b32 s88, s88, 4'); e('s_add_u32 s87, s87, s88'); e(f's_add_u32 s87, s87, {F4}')
e('v_lshlrev_b32 v8, 5, v0'); e('v_add_u32 v8, s87, v8')
o_voff()
e(f's_lshl_b32 s84, {sRB}, 12'); e(f's_add_u32 s84, s84, {OB}')
e(f's_lshl_b32 s86, {sW}, 2')
poll_flags('v8', 2)
stamp()
o_dma(OB, 4, 's86')
e('s_waitcnt vmcnt(0)')
e('s_barrier')
stamp()
e(f's_cmp_ge_u32 {sW}, 4'); e('s_cbranch_scc1 L_fin')
e('s_mov_b32 s85, 1024')
lab('L_outgemm')
e('v_and_b32 v6, 31, v0'); e('v_lshrrev_b32 v7, 5, v0')
e('v_bfe_u32 v8, v6, 1, 3'); e('v_xor_b32 v8, v8, v7')
e(f's_lshr_b32 s87, {sG}, 1'); e('s_lshl_b32 s88, s87, 12'); e('v_lshlrev_b32 v9, 7, v6'); e('v_add_u32 v9, s88, v9')
for j in range(4): e(f'v_xor_b32 v{16+j}, {2*j}, v8'); e(f'v_lshl_add_u32 v{16+j}, v{16+j}, 4, v9')
e(f's_and_b32 s88, {sG}, 1'); e('s_lshl_b32 s89, s88, 15'); e(f's_add_u32 s89, s89, {WOL}'); e('v_add_u32 v20, s89, v116')
e('v_lshlrev_b32 v21, 11, v6'); e('v_lshl_add_u32 v21, v7, 4, v21')
e(f's_lshl_b32 s89, {sRB}, 17'); e('s_lshl_b32 s87, s87, 16'); e('s_add_u32 s89, s89, s87'); e('s_add_u32 s89, s89, s85')
e(f's_lshl_b32 s87, {sHG}, 7'); e('s_add_u32 s89, s89, s87'); e('s_lshl_b32 s87, s88, 6'); e('s_add_u32 s89, s89, s87')
NB = 4
def rd(st):
    b = st % NB
    e(f'ds_read_b128 {vr(48+8*b)}, v{16 + st % 4} offset:{8192*(st//4)}')
    e(f'ds_read_b64_tr_b16 {vr(52+8*b,2)}, v20 offset:{1024*st}')
    e(f'ds_read_b64_tr_b16 {vr(54+8*b,2)}, v20 offset:{1024*st+256}')
for st in range(NB-1): rd(st)
for st in range(32):
    if st + NB - 1 < 32: rd(st + NB - 1)
    rem = min(NB - 1, 31 - st)
    e(f's_waitcnt lgkmcnt({3*rem})')
    b = st % NB
    e(f'v_mfma_f32_32x32x16_bf16 v[32:47], {vr(52+8*b)}, {vr(48+8*b)}, ' + ('0' if st == 0 else 'v[32:47]'))
e('s_nop 11')
for r in range(8): e(f'v_cvt_pk_bf16_f32 v{48+r}, v{32+2*r}, v{33+2*r}')
e('s_nop 1')
e('v_permlane32_swap_b32 v48, v50'); e('v_permlane32_swap_b32 v49, v51'); e('v_permlane32_swap_b32 v52, v54'); e('v_permlane32_swap_b32 v53, v55')
e(f'buffer_store_dwordx4 v[48:51], v21, {OUT}, s89 offen'); e(f'buffer_store_dwordx4 v[52:55], v21, {OUT}, s89 offen offset:32')
e('s_cmp_eq_u32 s85, 0'); e('s_cbranch_scc1 L_T6ret')
lab('L_fin')
if DIAG:
    e('s_waitcnt vmcnt(0)')
    stamp()
    e('s_lshl_b32 s87, s2, 4'); e(f's_add_u32 s87, s87, {sW}'); e('s_lshl_b32 s87, s87, 8'); e(f's_add_u32 s87, s87, {DBG}')
    e('v_lshlrev_b32 v4, 2, v0'); e(f'buffer_store_dword v127, v4, {WS}, s87 offen')
e('s_endpgm')
lab('L_fallback')
c('true max pass over all 64 key tiles for both q tiles (this wave only)')
e(f'v_add_u32 {vKO}, {KF}, v119')
e(f's_lshl_b32 s87, {sKQ}, 14'); e(f'v_subrev_u32 {vVO}, s87, {vVO}')
e('v_mov_b32 v124, 0xff800000'); e('v_mov_b32 v125, 0xff800000')
e('s_mov_b32 s94, 0')
lab('L_mx')
e(f'buffer_load_dwordx4 {vr(K0)}, {vKO}, {WS}, s94 offen sc1')
e('s_add_u32 s94, s94, 1024')
e('s_waitcnt vmcnt(0)')
e(f'v_mfma_f32_32x32x16_bf16 {vr(SA,16)}, {vr(K0)}, {vr(Q0)}, 0')
e(f'v_mfma_f32_32x32x16_bf16 {vr(SB,16)}, {vr(K0)}, {vr(Q1)}, 0')
e('s_nop 11')
for r in range(8): e(f'v_max3_f32 v124, v{SA+2*r}, v{SA+2*r+1}, v124')
for r in range(8): e(f'v_max3_f32 v125, v{SB+2*r}, v{SB+2*r+1}, v125')
e('s_cmp_lt_u32 s94, 0x10000'); e('s_cbranch_scc1 L_mx')
e('v_mov_b32 v60, v124'); e('v_mov_b32 v61, v125'); e('s_nop 1')
e('v_permlane32_swap_b32 v124, v60'); e('v_permlane32_swap_b32 v125, v61')
e('v_max_f32 v124, v124, v60'); e('v_max_f32 v125, v125, v61')
e('s_mov_b32 s85, 1')
for r in range(16): e(f'v_sub_f32 v{CC+r}, 0, v124')
lab('L_fbgo')
e('s_mov_b32 s91, 0xffff'); e('s_mov_b32 s94, 0'); e('s_mov_b32 s90, 32')
e('s_branch L_attn')
lab('L_fbret')
e('s_nop 11')
e('s_cmp_eq_u32 s85, 2'); e('s_cbranch_scc1 L_fb2')
c('keep head-0 result in LDS (own OSUM area), rerun for head 1')
e(f's_mul_i32 s87, {sG}, 4608'); e(f's_add_u32 s87, s87, {OSUM}'); e('v_lshlrev_b32 v92, 2, v0'); e('v_add_u32 v92, s87, v92')
for r in range(9): e(f'ds_write_b32 v92, v{O0+r} offset:{256*r}')
e('s_waitcnt lgkmcnt(0)')
e('s_mov_b32 s85, 2')
for r in range(16): e(f'v_sub_f32 v{CC+r}, 0, v125')
e('s_branch L_fbgo')
lab('L_fb2')
e(f's_mul_i32 s87, {sG}, 4608'); e(f's_add_u32 s87, s87, {OSUM}'); e('v_lshlrev_b32 v92, 2, v0'); e('v_add_u32 v92, s87, v92')
for r in range(9): e(f'ds_read_b32 v{O0+r}, v92 offset:{256*r}')
e('s_waitcnt lgkmcnt(0)')
e('s_branch L_norm')
lab('L_end')
e('s_endpgm')

errs = check(L)
for x in errs: print('HAZARD', x, file=sys.stderr)

ref = open(f'cdna_kernels/{NAME}.s.ref').read().splitlines()
head = [l for l in ref if l.startswith(';') and '@launch' not in l]
out = head + [f'; @launch grid=(256,1,1) block=(1024,1,1) lds={LDS_BYTES}',
  '.amdgcn_target "amdgcn-amd-amdhsa--gfx950"', '.text', f'.globl {NAME}_kernel', '.p2align 8', f'.type {NAME}_kernel,@function'] + L + [
  '.section .rodata,"a"', '.p2align 6', f'.amdhsa_kernel {NAME}_kernel',
  '  .amdhsa_next_free_vgpr 128', '  .amdhsa_next_free_sgpr 102', '  .amdhsa_accum_offset 128', '  .amdhsa_group_segment_fixed_size 0',
  '  .amdhsa_kernarg_size 88', '  .amdhsa_user_sgpr_count 2', '  .amdhsa_user_sgpr_kernarg_segment_ptr 1', '  .amdhsa_system_sgpr_workgroup_id_x 1',
  '.end_amdhsa_kernel']
dst = [a for a in sys.argv[1:] if not a.startswith('--')]
open(dst[0] if dst else f'cdna_kernels/{NAME}.s', 'w').write('\n'.join(out) + '\n')
print('instructions:', sum(1 for l in L if l.startswith('    ') and not l.strip().startswith(';')), 'hazards:', len(errs))
```

```python
import re
REG = re.compile(r'^(-|\|)?([vsa])(\d+)$')
RNG = re.compile(r'^(-|\|)?([vsa])\[(\d+):(\d+)\]$')
def regs(tok):
    tok = tok.strip()
    tok = tok.replace('abs(', '').replace(')', '')
    m = REG.match(tok)
    if m: return {(m.group(2), int(m.group(3)))}
    m = RNG.match(tok)
    if m: return {(m.group(2), i) for i in range(int(m.group(3)), int(m.group(4)) + 1)}
    if tok == 'vcc': return {('s', 106), ('s', 107)}
    if tok == 'exec': return {('x', 0)}
    if tok == 'm0': return {('m', 0)}
    return set()
TRANS = ('v_exp_f32', 'v_log_f32', 'v_rcp_f32', 'v_rsq_f32', 'v_sqrt_f32')
class Ins:
    def __init__(s, text, ln):
        s.text, s.ln = text, ln
        t = text.split(';')[0].strip()
        p = t.split(None, 1)
        s.op = p[0]
        rest = p[1] if len(p) > 1 else ''
        opsel = ' '.join(re.findall(r'op_sel\w*:\[[^\]]*\]', rest))
        rest = re.sub(r'\s*op_sel\w*:\[[^\]]*\]', '', rest)
        ops = [o.strip() for o in rest.split(',')] if rest else []
        s.mods = ''
        if ops:
            q = ops[-1].split(None, 1)
            ops[-1] = q[0]
            s.mods = q[1] if len(q) > 1 else ''
        s.ops = ops
        if not s.op.startswith('v_pk'): s.mods += ' ' + opsel
        op = s.op
        R = [regs(o) for o in ops]
        s.defs, s.uses = set(), set()
        s.mfma = op.startswith('v_mfma') or op.startswith('v_smfmac')
        s.valu = op.startswith('v_') and not s.mfma
        s.vmem = op.startswith('buffer_') or op.startswith('global_')
        s.ds = op.startswith('ds_')
        s.salu = op.startswith('s_')
        s.srcc = set(); s.srcab = set()
        s.ws = 1
        if op == 's_nop': s.ws = int(ops[0], 0) + 1
        U = lambda lst: set().union(*lst) if lst else set()
        if s.mfma:
            s.defs = R[0]; s.srcab = R[1] | R[2]
            if op.startswith('v_smfmac'):
                s.srcc = R[0]; s.srcab |= R[3]
            else:
                s.srcc = R[3]
            s.uses = s.srcab | s.srcc
            s.passes = 8 if '32x32' in op else 4
        elif op.startswith('v_permlane') and 'swap' in op:
            s.defs = R[0] | R[1]; s.uses = R[0] | R[1]
        elif s.valu:
            s.defs = R[0]; s.uses = U(R[1:])
            if op.startswith('v_fmac') or op.startswith('v_pk_fmac') or 'dpp' in s.mods or 'row_' in s.mods or 'quad_perm' in s.mods: s.uses |= R[0]
            if op.startswith('v_cndmask') and len(ops) == 3: s.uses |= regs('vcc')
        elif s.ds:
            if op.startswith('ds_read') or '_rtn' in op or op.startswith('ds_swizzle') or op.startswith('ds_bpermute'):
                s.defs = R[0]; s.uses = U(R[1:])
            else: s.uses = U(R)
        elif s.vmem:
            if 'load' in op and ' lds' not in (' ' + s.mods):
                s.defs = R[0]; s.uses = U(R[1:])
            else:
                s.uses = U(R)
                if ' lds' in (' ' + s.mods): s.uses |= regs('m0')
        elif s.salu:
            if op.startswith(('s_cmp', 's_cbranch', 's_branch', 's_waitcnt', 's_barrier', 's_nop', 's_setprio', 's_sleep', 's_endpgm', 's_setpc', 's_bitcmp')):
                s.uses = U(R)
            else:
                s.defs = R[0] if R else set(); s.uses = U(R[1:])
                if 'saveexec' in op: s.defs = s.defs | regs('exec')
        s.dpp = s.valu and ('row_' in s.mods or 'quad_perm' in s.mods or 'wave_' in s.mods)
        s.widestore = (s.vmem and 'store' in op and ('x4' in op or 'x3' in op))
def need(p, c):
    n = 0
    vd = {r for r in p.defs if r[0] in 'va'}
    sd = {r for r in p.defs if r[0] == 's'}
    if p.valu:
        if c.mfma and vd & c.uses: n = max(n, 2)
        if p.op.startswith(TRANS) and c.valu and not c.op.startswith(TRANS) and vd & c.uses: n = max(n, 1)
        if p.op.startswith(TRANS) and c.valu and vd & c.uses: n = max(n, 1)
        if c.op.startswith(('v_readlane', 'v_readfirstlane')) and vd & c.uses: n = max(n, 1)
        if c.dpp and vd & c.uses: n = max(n, 2)
        if c.op.startswith('v_permlane') and vd & c.uses: n = max(n, 2)
        if sd:
            if c.vmem and sd & c.uses: n = max(n, 5)
            if c.valu and sd & c.uses: n = max(n, 4 if c.op.startswith(('v_readlane', 'v_writelane')) else 2)
            pass
        if 'sdwa' in p.op or 'op_sel' in p.mods:
            if c.valu and vd & (c.uses | c.defs): n = max(n, 1)
    if p.mfma:
        big = p.passes + 4
        if c.mfma:
            if vd & c.srcab: n = max(n, big)
            if vd & c.srcc:
                if not (p.defs == c.srcc and p.passes == c.passes): n = max(n, p.passes + 2)
            elif vd & c.defs: n = max(n, p.passes + 2)
        elif (c.valu or c.vmem or c.ds) and vd & (c.uses | c.defs): n = max(n, big)
        if c.valu and p.srcc & c.defs: n = max(n, p.passes - 1)
    if p.salu and ('m', 0) in p.defs and (('m', 0) in c.uses) and not c.salu: n = max(n, 1)
    if p.widestore and (c.valu or c.mfma):
        data = regs(p.ops[0]) if p.op.startswith('buffer') else regs(p.ops[1])
        if data & c.defs: n = max(n, 2)
    return n
def check(lines):
    ins, labels = [], {}
    for ln, l in enumerate(lines):
        t = l.split(';')[0].strip()
        if not t or t.startswith('.'): continue
        if t.endswith(':'):
            labels[t[:-1]] = len(ins); continue
        ins.append(Ins(l, ln))
    def succ(i):
        x = ins[i]
        if x.op == 's_endpgm': return []
        if x.op.startswith('s_setpc'):
            tg = max(labels[y.ops[1]] for y in ins if y.op == 's_call_b64' and labels[y.ops[1]] <= i)
            return [k + 1 for k, y in enumerate(ins) if y.op == 's_call_b64' and labels[y.ops[1]] == tg]
        if x.op == 's_call_b64': return [labels[x.ops[1]]]
        if x.op == 's_branch': return [labels[x.ops[0]]]
        r = [i + 1] if i + 1 < len(ins) else []
        if x.op.startswith('s_cbranch'): r.append(labels[x.ops[0]])
        return r
    errs = []
    for i, p in enumerate(ins):
        if not (p.valu or p.mfma or p.widestore or (p.salu and ('m', 0) in p.defs)): continue
        lim = 12 if p.mfma else 5
        best = {}
        stack = [(j, 0) for j in succ(i)]
        while stack:
            j, d = stack.pop()
            if j >= len(ins) or d >= lim: continue
            if j in best and best[j] <= d: continue
            best[j] = d
            c = ins[j]
            n = need(p, c)
            if n > d: errs.append(f'L{p.ln+1} [{p.text.strip()}] -> L{c.ln+1} [{c.text.strip()}]: need {n}, have {d}')
            for k in succ(j): stack.append((k, d + c.ws))
    return errs
```

```python
import sys, struct
from hazard import check

NAME = 'concat_heads__linear_attn_block__grouped_kv_mqa__prompt'
DIAG = '--diag' in sys.argv
FINE = '--fine' in sys.argv
def opt(name, default):
    for a in sys.argv:
        if a.startswith(f'--{name}='): return type(default)(a.split('=')[1])
    return default
def f32(x): return '0x%08x' % struct.unpack('<I', struct.pack('<f', x))[0]

GEN, F1, F2, F2B, F3, F4 = 0, 0x1000, 0x4000, 0x2000, 0x8000, 0xC000
KF, VF, KVF, PQW, PART, OA, OB, DBG = 0x10000, 0x20000, 0x30000, 0x600000, 0x800000, 0x200000, 0x400000, 0xA00000
WS_BYTES = 0x1000000
S = [0, 32768, 65536, 98304]
SM_ = 131072
OSUM = SM_; KVS = SM_; PK = SM_; VV = SM_ + 8192
QX = SM_ + 18432; QN = QX + 8192; CNT = 163584
C_TICKET, C_DONE, C_PKV, C_KVD, C_SYNC, C_FIN1, C_OWN, C_XCH, C_KM = 0, 16, 32, 36, 40, 44, 48, 52, 56
LDS_BYTES = 163840
KVPOS = opt('kvpos', 4)
FLAG_AT = opt('flagat', 'Q1')
ITS = ['Q0', 'Q1', 'Q2', 'Q3'] + [f'A{i}' for i in range(8)]
order = [f'A{i}' for i in range(KVPOS)] + ['K0'] + [f'A{i}' for i in range(KVPOS, 8)] + ['K1', 'K2']
slot = {'Q0': 0, 'Q1': 1, 'Q2': 2, 'Q3': 3}
ISS = {}
for n, it in enumerate(ITS[1:]):
    item = order[n]; slot[item] = slot[ITS[n]]; ISS[it] = item
slot['K3'] = slot['A7']
KVSLOT = [slot[f'K{q}'] for q in range(4)]
assert sorted(KVSLOT) == [0, 1, 2, 3]
issued = ['Q0', 'Q1', 'Q2', 'Q3']; VM = {}; K0_READY = None
for it in ITS:
    VM[it] = 4 * (len(issued) - 1 - issued.index(it))
    if K0_READY is None and 'K0' in issued and issued.index('K0') < issued.index(it): K0_READY = it
    if it in ISS: issued.append(ISS[it])
K0_ISS = [k for k, v in ISS.items() if v == 'K0'][0]
XA, WQKV, WOA, XB, WQ, WKV, WOB, OUT, WS = [f's[{4*i+4}:{4*i+7}]' for i in range(9)]
sW, sRB, sHG, sRH, sCT, sTAG, sG, sKQ, sU, sB = 's40', 's41', 's42', 's43', 's44', 's45', 's46', 's47', 's48', 's49'
SPIN_CAP = 400000

L = []
def e(s): L.append('    ' + s)
def lab(s): L.append(s + ':')
def c(s): L.append('    ; ' + s)
_u = [0]
def uid(p):
    _u[0] += 1
    return f'L_{p}{_u[0]}'
def stamp(i):
    if not DIAG: return
    e('s_memrealtime s[98:99]'); e('s_memtime s[100:101]'); e('s_waitcnt lgkmcnt(0)')
    e(f'v_writelane_b32 v127, s98, {i}'); e(f'v_writelane_b32 v127, s100, {32+i}')
def vr(a, n=4): return f'v[{a}:{a+n-1}]'
def srd(idx, lo, size):
    b = 4*idx + 4
    e(f's_mov_b64 s[{b}:{b+1}], s[{lo}:{lo+1}]'); e(f's_mov_b32 s{b+2}, {hex(size)}'); e(f's_mov_b32 s{b+3}, 0x20000')
vCNT = 'v118'
def lds_wait(off, target, addr=vCNT, sleep=4):
    l0, l1 = uid('lw'), uid('lwx')
    e('s_mov_b32 s96, 0')
    lab(l0)
    e(f'ds_read_b32 v120, {addr} offset:{off}')
    e('s_add_u32 s96, s96, 1')
    e('s_waitcnt lgkmcnt(0)')
    e('v_readfirstlane_b32 s97, v120')
    e(f's_cmp_gt_u32 s96, {SPIN_CAP*2}'); e(f's_cbranch_scc1 {l1}')
    e(f's_cmp_ge_u32 s97, {target}'); e(f's_cbranch_scc1 {l1}')
    if sleep: e(f's_sleep {sleep}')
    e(f's_branch {l0}')
    lab(l1)
def lds_signal(off, addr=vCNT):
    e('v_mov_b32 v120, 1')
    e('s_mov_b64 exec, 1')
    e(f'ds_add_u32 {addr}, v120 offset:{off}')
    e('s_mov_b64 exec, -1')
def poll_load(vaddr, soff, vt, width):
    n = int(vt[1:])
    if width == 1: e(f'buffer_load_dword {vt}, {vaddr}, {WS}, {soff} offen sc1')
    else: e(f'buffer_load_dwordx2 v[{n}:{n+1}], {vaddr}, {WS}, {soff} offen sc1')
def poll_flags(vaddr, soff, nlanes, vt='v120', width=1, sleep=8, preissued=False):
    l0, l1, l2 = uid('pf'), uid('pfx'), uid('pfw')
    if nlanes < 64: e(f's_mov_b64 exec, {hex((1 << nlanes) - 1)}')
    e('s_mov_b32 s96, 0')
    if preissued: e(f's_branch {l2}')
    lab(l0)
    poll_load(vaddr, soff, vt, width)
    e('s_add_u32 s96, s96, 1')
    lab(l2)
    e('s_waitcnt vmcnt(0)')
    e(f'v_cmp_ne_u32 vcc, {sTAG}, {vt}')
    e(f's_cmp_gt_u32 s96, {SPIN_CAP}'); e(f's_cbranch_scc1 {l1}')
    e('s_cmp_eq_u64 vcc, 0'); e(f's_cbranch_scc1 {l1}')
    if sleep: e(f's_sleep {sleep}')
    e(f's_branch {l0}')
    lab(l1)
    if nlanes < 64: e('s_mov_b64 exec, -1')
def flag_store(soff, v2=None):
    e(f'v_mov_b32 v122, {sTAG}')
    if v2: e(f'v_mov_b32 v123, {v2}')
    e('s_mov_b64 exec, 1')
    if v2: e(f'buffer_store_dwordx2 v[122:123], v119, {WS}, {soff} offen sc1')
    else: e(f'buffer_store_dword v122, v119, {WS}, {soff} offen sc1')
    e('s_mov_b64 exec, -1')
def mk_tag():
    e(f's_mul_i32 {sTAG}, {sTAG}, 0x9E3779B1'); e(f's_add_u32 {sTAG}, {sTAG}, 0x7F4A7C15')
def pk_tree(base, n):
    st = 4
    while n > 1:
        for i in range(n // 2):
            a, b = base + 2*st*i, base + 2*st*i + st
            e(f'v_pk_add_f32 {vr(a,2)}, {vr(a,2)}, {vr(b,2)}'); e(f'v_pk_add_f32 {vr(a+2,2)}, {vr(a+2,2)}, {vr(b+2,2)}')
        st *= 2; n //= 2
vXB, vWB = 'v124', 'v116'
def read_addrs():
    e('v_and_b32 v6, 31, v0'); e('v_lshrrev_b32 v7, 5, v0')
    e('v_bfe_u32 v8, v6, 1, 3'); e('v_xor_b32 v8, v8, v7')
    e(f's_lshl_b32 s87, {sRH}, 12'); e('v_lshlrev_b32 v9, 7, v6'); e('v_lshl_add_u32 v9, v8, 4, v9'); e(f'v_add_u32 {vXB}, s87, v9')
    e('v_bfe_u32 v8, v0, 2, 2'); e('v_lshl_add_u32 v8, v7, 3, v8'); e('v_lshlrev_b32 v8, 7, v8')
    e('v_bfe_u32 v9, v0, 3, 1'); e(f'v_xor_b32 v9, {sCT}, v9'); e('v_lshl_add_u32 v8, v9, 6, v8')
    e('v_bfe_u32 v9, v0, 4, 1'); e('v_lshl_add_u32 v8, v9, 5, v8'); e('v_and_b32 v9, 3, v0'); e(f'v_lshl_add_u32 {vWB}, v9, 3, v8')
def set_bases(xb, wb, x0=16, w0=20):
    e(f'v_add_u32 v{x0}, {xb}, {vXB}')
    for j in range(1, 4): e(f'v_xor_b32 v{x0+j}, {32*j}, v{x0}')
    e(f'v_add_u32 v{w0}, {wb}, {vWB}')

def o_addr(d):
    e(f's_lshl1_add_u32 {d}, {sRB}, {sRH}'); e(f's_lshl3_add_u32 {d}, {d}, {sHG}'); e(f's_lshl1_add_u32 {d}, {d}, {sCT}'); e(f's_lshl_b32 {d}, {d}, 11')
def common():
    e(f's_and_b32 {sG}, {sW}, 3'); e(f's_lshr_b32 {sKQ}, {sW}, 2'); e(f's_lshr_b32 {sRH}, {sG}, 1'); e(f's_and_b32 {sCT}, {sG}, 1')
    e(f's_lshl_b32 {sB}, {sHG}, 5'); e(f's_add_u32 {sB}, {sB}, {sRB}')
    e(f'v_mov_b32 {vCNT}, {CNT}')
    read_addrs()
    e(f's_sub_u32 s87, {sW}, 4'); e('s_cmp_lt_u32 s87, 8'); e(f's_cselect_b32 s87, {f32(1e-6)}, 0')
    for r in range(16): e(f'v_mov_b32 v{32+r}, s87')
    e(f's_lshl_b32 s90, {sG}, 11'); e('v_add_u32 v125, s90, v119')
lab(NAME + '_kernel')
e('s_cmp_ge_u32 s2, 256'); e('s_cbranch_scc1 L_end')
e('s_load_dwordx16 s[64:79], s[0:1], 0')
e('s_load_dwordx2 s[80:81], s[0:1], 64')
e('s_load_dwordx2 s[82:83], s[0:1], 80')
e('v_lshrrev_b32 v1, 6, v0')
e('v_and_b32 v0, 63, v0')
if DIAG: e('v_mov_b32 v127, 0')
if FINE: e('v_mov_b32 v126, 0')
e(f'v_readfirstlane_b32 {sW}, v1')
c('rb = ((b>>3)&7)*4 + (b&3) ; hg = (b>>6)*2 + ((b>>2)&1)')
e('s_bfe_u32 s50, s2, 0x30003'); e('s_and_b32 s52, s2, 3'); e(f's_lshl2_add_u32 {sRB}, s50, s52')
e('s_lshr_b32 s51, s2, 6'); e('s_bfe_u32 s52, s2, 0x10002'); e(f's_lshl1_add_u32 {sHG}, s51, s52')
e('v_lshlrev_b32 v119, 4, v0')
e(f's_and_b32 {sU}, {sW}, 7')
e(f's_lshl_b32 s58, {sRB}, 16')
e(f's_cmp_ge_u32 {sW}, 8'); e('s_cbranch_scc1 L_loader0')
e('v_lshrrev_b32 v6, 3, v0'); e('v_and_b32 v7, 7, v0'); e('v_lshrrev_b32 v8, 1, v6'); e('v_xor_b32 v7, v7, v8')
e('v_lshlrev_b32 v4, 10, v6'); e('v_lshl_add_u32 v4, v7, 4, v4'); e('v_xor_b32 v5, 64, v4')
e('s_lshl_b32 s54, s51, 14'); e('s_add_u32 s52, s58, s54')
e(f's_lshl_b32 s54, {sU}, 7'); e('s_add_u32 s52, s52, s54'); e('s_add_u32 s53, s52, 8192')
e(f's_lshl_b32 s55, {sU}, 11')
e(f's_add_u32 m0, s55, {S[3]}')
e(f's_bitcmp1_b32 {sHG}, 0')
e('s_mov_b32 s26, 0x4000'); e('s_mov_b32 s27, 0x20000'); e('s_mov_b32 s18, 0x200000'); e('s_mov_b32 s19, 0x20000')
e('s_waitcnt lgkmcnt(0)')
e('s_cselect_b64 s[24:25], s[76:77], s[74:75]'); e('s_mov_b64 s[16:17], s[70:71]')
e(f'buffer_load_dwordx4 v4, {XB}, s52 offen lds')
e(f's_add_u32 m0, s55, {S[3] + 1024}'); e('s_nop 0')
e(f'buffer_load_dwordx4 v5, {XB}, s53 offen lds')
e(f's_add_u32 m0, s55, {KVS}'); e('s_nop 0')
e(f'buffer_load_dwordx4 v119, {WKV}, s55 offen lds')
e(f'buffer_load_dwordx4 v119, {WKV}, s55 offen offset:1024 lds')
e('v_and_b32 v2, 15, v0'); e('v_lshrrev_b32 v3, 4, v0')
e(f's_load_dword {sTAG}, s[82:83], {GEN}')
stamp(0)
c('code prefetch into L2 (wave 7 of the first 32 workgroups)')
e(f's_cmp_lg_u32 {sW}, 7'); e('s_cbranch_scc1 L_nopf'); e('s_cmp_ge_u32 s2, 32'); e('s_cbranch_scc1 L_nopf')
e('s_getpc_b64 s[56:57]')
lab('L_pc')
e('v_lshlrev_b32 v5, 7, v0'); e('v_add_u32 v6, 0x2000, v5')
e('global_load_dword v100, v5, s[56:57]')
e('v_cmp_gt_u32 vcc, L_end-L_pc, v6'); e('s_and_saveexec_b64 s[60:61], vcc'); e('global_load_dword v101, v6, s[56:57]'); e('s_mov_b64 exec, -1')
lab('L_nopf')
e('v_lshlrev_b32 v6, 8, v3'); e('v_lshl_add_u32 v6, v2, 3, v6'); e(f's_add_u32 s87, s55, {KVS}'); e('v_add_u32 v6, s87, v6')
e('v_add_u32 v7, s87, v119')
e('v_lshrrev_b32 v8, 1, v2'); e('v_xor_b32 v8, v8, v3'); e('v_lshlrev_b32 v10, 7, v2'); e('v_lshl_add_u32 v10, v8, 4, v10')
e(f's_add_u32 s87, s55, {S[3]}'); e('v_add_u32 v10, s87, v10'); e('v_xor_b32 v11, 64, v10')
e('v_mov_b32 v8, 0'); e('v_lshrrev_b32 v9, 2, v119'); e(f'v_add_u32 v9, {CNT}, v9'); e('ds_write_b32 v9, v8')
srd(8, 82, WS_BYTES); e('v_mov_b32 v14, 0')
e(f's_cmp_lg_u32 {sW}, 4'); e('s_cbranch_scc1 L_nored')
c('reducer (wave 4) store address')
e(f's_lshl2_add_u32 s87, {sRB}, s51')
e('s_lshr_b32 s88, s87, 1'); e('s_lshl_b32 s88, s88, 10'); e('s_and_b32 s89, s87, 1'); e('s_lshl_b32 s89, s89, 8'); e('s_add_u32 s88, s88, s89'); e(f's_add_u32 s88, s88, {KF}')
e('s_lshl_b32 s89, s87, 9'); e(f's_add_u32 s89, s89, {VF}')
e('v_and_b32 v8, 1, v3'); e('v_lshrrev_b32 v9, 1, v3')
e('v_lshlrev_b32 v14, 9, v8'); e('v_lshl_add_u32 v14, v9, 3, v14')
e('v_lshlrev_b32 v15, 8, v9'); e('v_lshl_add_u32 v15, v8, 3, v15')
e('s_lshl_b32 s86, s2, 4'); e(f's_add_u32 s86, s86, {F1}')
e(f's_bitcmp1_b32 {sHG}, 0')
e('s_cselect_b32 s88, s89, s88'); e('s_cselect_b64 vcc, -1, 0')
e('v_cndmask_b32 v14, v14, v15, vcc'); e('v_lshl_add_u32 v14, v2, 4, v14')
e(f'v_add_u32 v15, {KVS}, v119')
e('s_setprio 3')
lab('L_nored')
e(f's_bitcmp1_b32 {sHG}, 0')
e('s_waitcnt vmcnt(0)')
e('ds_read_b128 v[80:83], v10'); e('ds_read_b128 v[84:87], v11')
for i in range(4): e(f'ds_read_b64_tr_b16 {vr(88+2*i,2)}, v6 offset:{(i>>1)*1024 + (i&1)*128}')
e('s_waitcnt lgkmcnt(0)')
e('s_cbranch_scc1 L_kvV')
e('v_mfma_f32_16x16x32_bf16 v[96:99], v[88:91], v[80:83], 0'); e('v_mfma_f32_16x16x32_bf16 v[96:99], v[92:95], v[84:87], v[96:99]'); e('s_branch L_kvJ')
lab('L_kvV'); e('v_mfma_f32_16x16x32_bf16 v[96:99], v[80:83], v[88:91], 0'); e('v_mfma_f32_16x16x32_bf16 v[96:99], v[84:87], v[92:95], v[96:99]')
lab('L_kvJ')
mk_tag()
e('s_nop 5')
e('ds_write_b128 v7, v[96:99]')
e('s_waitcnt lgkmcnt(0)')
e('s_barrier')
stamp(1)
e(f's_cmp_lg_u32 {sW}, 4'); e('s_cbranch_scc1 L_common')
c('wave 4: reduce 8 partials, publish K/V fragment')
for i in range(8): e(f'ds_read_b128 {vr(48+4*i)}, v15 offset:{2048*i}')
e('s_waitcnt lgkmcnt(0)')
pk_tree(48, 8)
e('v_cvt_pk_bf16_f32 v52, v48, v49'); e('v_cvt_pk_bf16_f32 v53, v50, v51')
e(f'buffer_store_dwordx2 v[52:53], v14, {WS}, s88 offen sc1')
e('v_mul_f32 v54, v48, v48'); e('v_fmac_f32 v54, v49, v49'); e('v_fmac_f32 v54, v50, v50'); e('v_fmac_f32 v54, v51, v51')
e('v_mov_b32 v55, v54'); e('s_nop 1'); e('v_permlane32_swap_b32 v54, v55'); e('v_add_f32 v54, v54, v55')
e('v_mov_b32 v55, v54'); e('s_nop 1'); e('v_permlane16_swap_b32 v54, v55'); e('v_add_f32 v54, v54, v55')
for sh in (8, 4, 2, 1):
    e('s_nop 1'); e(f'v_max_f32_dpp v54, v54, v54 row_ror:{sh} row_mask:0xf bank_mask:0xf')
e('v_cndmask_b32 v117, v54, 0, vcc')
e('s_branch L_common')

lab('L_loader0')
e('v_lshrrev_b32 v6, 3, v0'); e('v_and_b32 v7, 7, v0')
e(f's_lshl_b32 s56, {sU}, 3'); e('v_add_u32 v6, s56, v6')
e('v_bfe_u32 v8, v6, 1, 3'); e('v_xor_b32 v8, v7, v8')
e('v_lshlrev_b32 v9, 10, v6'); e('v_lshl_add_u32 v10, v8, 4, v9')
e('v_bfe_u32 v8, v6, 1, 1'); e('v_lshlrev_b32 v8, 2, v8'); e('v_xor_b32 v8, v7, v8'); e('v_lshlrev_b32 v8, 4, v8')
e('v_add_u32 v11, v9, v8')
e(f's_lshl_b32 s55, {sU}, 10')
e('s_add_u32 s61, s50, s51'); e('s_add_u32 s63, s61, s51'); e('s_and_b32 s61, s61, 3'); e('s_and_b32 s63, s63, 7')
e(f's_lshl_b32 s59, {sHG}, 7')
e('s_mov_b32 s18, 0x200000'); e('s_mov_b32 s19, 0x20000'); e('s_mov_b32 s22, 0x80000'); e('s_mov_b32 s23, 0x20000')
e('s_waitcnt lgkmcnt(0)')
e('s_mov_b64 s[16:17], s[70:71]'); e('s_mov_b64 s[20:21], s[72:73]')
def issue_Q(sl):
    sb = S[sl]
    e('s_lshl_b32 s87, s61, 8'); e('s_add_u32 s87, s87, s58'); e(f's_add_u32 m0, s55, {sb}'); e('s_lshl_b32 s88, s61, 17')
    e(f'buffer_load_dwordx4 v10, {XB}, s87 offen lds')
    e(f's_add_u32 m0, s55, {sb + 16384}'); e('s_add_u32 s88, s88, s59')
    e(f'buffer_load_dwordx4 v11, {WQ}, s88 offen lds')
    e(f's_add_u32 m0, s55, {sb + 8192 - 128}'); e('s_add_u32 s61, s61, 1')
    e(f'buffer_load_dwordx4 v10, {XB}, s87 offen offset:128 lds')
    e(f's_add_u32 m0, s55, {sb + 24576}'); e('s_add_u32 s88, s88, 65536')
    e(f'buffer_load_dwordx4 v11, {WQ}, s88 offen lds')
    e('s_and_b32 s61, s61, 3')
def pieces(item):
    sb = S[slot[item]]
    if item[0] == 'A':
        return [['s_lshl_b32 s87, s63, 7', 's_add_u32 s87, s87, s58', f's_add_u32 m0, s55, {sb}', f's_mul_i32 s88, s63, {64*3072}', f'buffer_load_dwordx4 v10, {XA}, s87 offen lds'],
                [f's_add_u32 m0, s55, {sb + 8192}', 's_add_u32 s88, s88, s59', f'buffer_load_dwordx4 v12, {WQKV}, s88 offen lds'],
                [f's_add_u32 m0, s55, {sb + 16384 - 1024}', 's_add_u32 s63, s63, 1', f'buffer_load_dwordx4 v12, {WQKV}, s88 offen offset:1024 lds'],
                [f's_add_u32 m0, s55, {sb + 24576 - 2048}', 's_and_b32 s63, s63, 7', f'buffer_load_dwordx4 v12, {WQKV}, s88 offen offset:2048 lds']]
    q = int(item[1])
    return [[f's_add_u32 m0, s55, {sb + 8192*i}', f's_add_u32 s87, s55, {src}', f'buffer_load_dwordx4 v119, {WS}, s87 offen sc1 lds']
            for i, src in enumerate((KF + q*16384, KF + q*16384 + 8192, VF + q*16384, VF + q*16384 + 8192))]
e(f's_load_dword {sTAG}, s[82:83], {GEN}')
stamp(0)
e('v_mul_u32_u24 v12, 3072, v6'); e('v_add_u32 v12, v12, v8')
srd(0, 64, 0x200000); srd(1, 66, 0x180000); srd(8, 82, WS_BYTES)
common()
for i in range(opt('npre', 1)): issue_Q(i)
e('s_waitcnt lgkmcnt(0)')
mk_tag()
e('s_barrier')
stamp(1)
for i in range(opt('npre', 1), 4): issue_Q(i)
e('s_branch L_common2')

lab('L_common')
common()
lab('L_common2')
e(f's_cmp_lg_u32 {sKQ}, 0'); e('s_cbranch_scc1 L_Awaves')

Q0, Q1, CC, O0, O1, SA, SB, K0, K1, V0, V1 = 4, 8, 12, 28, 44, 60, 76, 92, 96, 100, 108
for it in range(4):
    set_bases(S[it], S[it] + 16384)
    e('s_barrier')
    e('s_call_b64 s[52:53], L_gemm8')
nb_before = ITS.index(K0_READY) - ITS.index('A0') + 1
e(f's_mov_b32 s91, {nb_before}')
e(f's_mov_b32 s84, {len(ITS) - 1 - ITS.index(K0_READY) + 1}')
def maybe_bar():
    l = uid('mb')
    e('s_cmp_eq_u32 s91, 0'); e(f's_cbranch_scc1 {l}'); e('s_barrier'); e('s_sub_u32 s91, s91, 1'); lab(l)
maybe_bar()
stamp(2)
e(f's_mov_b32 s87, {f32(0.25*1.4426950408889634)}')
e(f'v_add_u32 v62, {QX}, v125')
e(f's_lshl_b32 s88, {sG}, 8'); e(f's_add_u32 s88, s88, {QN}'); e('v_lshrrev_b32 v63, 2, v119'); e('v_add_u32 v63, s88, v63')
e('s_nop 1')
for r in range(16): e(f'v_mul_f32 v{32+r}, s87, v{32+r}')
for r in range(8): e(f'v_cvt_pk_bf16_f32 v{Q0+r}, v{32+2*r}, v{33+2*r}')
e(f'ds_write_b128 v62, {vr(Q0)}'); e(f'ds_write_b128 v62, {vr(Q1)} offset:1024')
maybe_bar()
e('v_mul_f32 v56, v32, v32'); e('v_mul_f32 v57, v40, v40')
for r in range(1, 8): e(f'v_fmac_f32 v56, v{32+r}, v{32+r}'); e(f'v_fmac_f32 v57, v{40+r}, v{40+r}')
e('v_mov_b32 v58, v56'); e('v_mov_b32 v59, v57'); e('s_nop 1')
e('v_permlane32_swap_b32 v56, v58'); e('v_permlane32_swap_b32 v57, v59')
e('v_add_f32 v56, v56, v58'); e('v_add_f32 v57, v57, v59'); e('v_max_f32 v60, v56, v57')
e('ds_write_b32 v63, v60')
e('s_waitcnt lgkmcnt(0)')
maybe_bar()
if opt('qprio', 0): e(f's_setprio {opt("qprio", 0)}')
e('s_branch L_attn_setup')

lab('L_Awaves')
e(f's_setprio {opt("aprio", 3)}')
e(f's_lshl_b32 s87, {sKQ}, 13'); e(f'v_add_u32 v9, s87, {vWB}')
e(f'v_mov_b32 v16, {vXB}')
for j in range(1, 4): e(f'v_xor_b32 v{16+j}, {32*j}, v16')
e('v_mov_b32 v20, v9')
for j in range(5): e(f'v_add_u32 v{22+j}, 0x10000, v{16+j}')
e(f's_lshl_b32 s60, {sG}, 10'); e(f's_add_u32 s60, s60, {F1}')
def addr_of(sl): return (16, 20, S[sl]) if sl < 2 else (22, 26, S[sl] - 65536)
def mf(n, j, T):
    base = 48 + 32*(n % 2)
    a, b = (base+16+4*j, base+4*j) if T else (base+4*j, base+16+4*j)
    e(f'v_mfma_f32_32x32x16_bf16 v[32:47], {vr(a)}, {vr(b)}, v[32:47]')
def mfmas(n, pcs=None, pre=False):
    ln, lj = uid('gn'), uid('gj')
    e(f's_cmp_ge_u32 {sW}, 8'); e(f's_cbranch_scc1 {ln}')
    if pre: poll_load('v119', 's60', 'v112', 2)
    if n >= 0:
        for j in range(4): mf(n, j, True)
    e(f's_branch {lj}')
    lab(ln)
    for j in range(4):
        if n >= 0: mf(n, j, False)
        if pcs:
            for x in pcs[j]: e(x)
    lab(lj)
POLL_PRE = ITS[ITS.index(K0_ISS) - opt('pollpre', 1)]
RFIRST = opt('rfirst', 1)
for it in ITS:
    if it == FLAG_AT:
        e(f's_cmp_lg_u32 {sW}, 4'); e('s_cbranch_scc1 L_nf1')
        e('s_waitcnt vmcnt(0)')
        flag_store('s86', 'v117')
        lab('L_nf1')
    if it == K0_ISS:
        e(f's_cmp_lg_u32 {sKQ}, 1'); e('s_cbranch_scc1 L_npoll')
        poll_flags('v119', 's60', 64, 'v112', 2, sleep=0, preissued=True)
        for sh in (8, 4, 2, 1):
            e(f'v_max_f32_dpp v113, v113, v113 row_ror:{sh} row_mask:0xf bank_mask:0xf'); e('s_nop 1')
        e('s_mov_b32 s88, 0x00010001'); e('s_mov_b32 s89, 0x00010001'); e('s_mov_b64 exec, s[88:89]')
        e(f'ds_max_u32 {vCNT}, v113 offset:{C_KM}')
        e('s_mov_b64 exec, -1')
        if not FINE: stamp(2)
        lab('L_npoll')
    if FINE: e('s_memtime s[100:101]')
    if FINE:
        e('s_waitcnt lgkmcnt(0)')
        k = ITS.index(it)
        if k > 0:
            for q, r in enumerate((92, 94, 98, 100)): e(f'v_writelane_b32 v126, s{r}, {5*(k-1)+q}')
    e(f's_waitcnt vmcnt({VM[it]}) lgkmcnt(0)')
    if FINE:
        e('s_memtime s[100:101]'); e('s_waitcnt lgkmcnt(0)')
        if k > 0: e(f'v_writelane_b32 v126, s100, {5*(k-1)+4}')
    e('s_barrier')
    if FINE: e('s_memtime s[92:93]'); e('s_memtime s[94:95]')
    def reads():
        if it[0] == 'A':
            n = int(it[1]); base = 48 + 32*(n % 2)
            xa, wa, off = addr_of(slot[it])
            for j in range(4):
                e(f'ds_read_b128 {vr(base+4*j)}, v{xa+j} offset:{off}')
                e(f'ds_read_b64_tr_b16 {vr(base+16+4*j,2)}, v{wa} offset:{off + 2048*j}')
                e(f'ds_read_b64_tr_b16 {vr(base+18+4*j,2)}, v{wa} offset:{off + 2048*j + 512}')
    if it[0] == 'A':
        lr, lm, lx = uid('r'), uid('m'), uid('x')
        e(f's_cmp_ge_u32 {sW}, {opt("late", 12)}'); e(f's_cbranch_scc1 {lm}')
        lab(lr)
        reads()
        e(f's_cmp_ge_u32 {sW}, {opt("late", 12)}'); e(f's_cbranch_scc1 {lx}')
        lab(lm)
        mfmas(int(it[1]) - 1, pieces(ISS[it]), it == POLL_PRE)
        e(f's_cmp_ge_u32 {sW}, {opt("late", 12)}'); e(f's_cbranch_scc1 {lr}')
        lab(lx)
        if FINE: e('s_memtime s[98:99]')
    else:
        if FINE: e('s_memtime s[98:99]')
        if it in ISS: mfmas(-1, pieces(ISS[it]), it == POLL_PRE)
e('s_waitcnt lgkmcnt(0)')
mfmas(7)
stamp(3)
e('s_setprio 3')
e(f's_mov_b32 s87, {f32(1.4426950408889634)}')
e(f'v_add_u32 v6, {PK}, v125')
e('s_nop 7')
e(f's_cmp_eq_u32 {sKQ}, 3'); e('s_cbranch_scc1 L_postV')
for r in range(16): e(f'v_mul_f32 v{48+r}, s87, v{32+r}')
for r in range(16): e(f'v_exp_f32_e64 v{48+r}, v{48+r} clamp')
for r in range(16): e(f'v_max_f32 v{32+r}, {f32(1e-6)}, v{32+r}')
for r in range(16): e(f'v_add_f32 v{32+r}, v{32+r}, v{48+r}')
lab('L_postV')
for r in range(8): e(f'v_cvt_pk_bf16_f32 v{48+r}, v{32+2*r}, v{33+2*r}')
e(f's_cmp_eq_u32 {sKQ}, 1'); e('s_cbranch_scc1 L_postPQ')
e(f's_sub_u32 s87, {sKQ}, 2'); e('s_lshl_b32 s87, s87, 13'); e('v_add_u32 v6, s87, v6')
e('ds_write_b128 v6, v[48:51]'); e('ds_write_b128 v6, v[52:55] offset:1024')
e('s_branch L_postJ')
lab('L_postPQ')
e(f's_lshl_b32 s87, {sB}, 13'); e(f's_add_u32 s87, s87, {PQW}')
e(f'buffer_store_dwordx4 v[48:51], v125, {WS}, s87 offen sc1'); e(f'buffer_store_dwordx4 v[52:55], v125, {WS}, s87 offen offset:1024 sc1')
lab('L_postJ')
e('s_waitcnt vmcnt(0) lgkmcnt(0)')
e('s_barrier')
stamp(12)
e(f's_cmp_lg_u32 {sKQ}, 3'); e('s_cbranch_scc1 L_getQ')
c('kq3: kv partial job g = (ct = g&1, e = g>>1); own K/V quarter; R1; T5')
e(f's_lshl_b32 s87, {sCT}, 11'); e(f's_add_u32 s87, s87, {PK}'); e('v_add_u32 v6, s87, v119')
for i in range(4): e(f'ds_read_b128 {vr(48+4*i)}, v6 offset:{(i>>1)*4096 + (i&1)*1024}')
for i in range(4): e(f'ds_read_b128 {vr(64+4*i)}, v6 offset:{8192 + (i>>1)*4096 + (i&1)*1024}')
e('s_mov_b32 s88, 0xffff0000'); e('s_mov_b32 s89, 0x0000ffff'); e(f's_cmp_eq_u32 {sRH}, 0'); e('s_cselect_b32 s88, s88, s89'); e('s_mov_b32 s89, s88')
e('s_waitcnt lgkmcnt(0)')
lds_signal(C_PKV)
e('s_mov_b64 exec, s[88:89]')
for r in range(16): e(f'v_mov_b32 v{64+r}, 0x3f803f80')
e('s_mov_b64 exec, -1')
e('s_nop 0')
for i in range(4): e(f'v_mfma_f32_32x32x16_bf16 v[32:47], {vr(48+4*i)}, {vr(64+4*i)}, ' + ('0' if i == 0 else 'v[32:47]'))
e(f's_lshl_b32 s88, {sB}, 13'); e(f's_add_u32 s85, s88, {PQW}'); e(f's_add_u32 s88, s88, {PART}')
e(f's_lshl2_add_u32 s89, {sHG}, {sG}'); e('s_lshl_b32 s89, s89, 5'); e(f's_add_u32 s89, s89, {sRB}'); e('s_lshl_b32 s89, s89, 4'); e(f's_add_u32 s89, s89, {F2}')
e(f's_lshl_b32 s55, {sG}, 10')
e('s_nop 0')
e(f's_cmp_eq_u32 {sRH}, 0'); e('s_cbranch_scc0 L_kvh1')
e(f'buffer_store_dwordx4 v[32:35], v125, {WS}, s88 offen sc1'); e(f'buffer_store_dwordx4 v[36:39], v125, {WS}, s88 offen offset:1024 sc1')
e('s_branch L_kvh2')
lab('L_kvh1')
e(f'buffer_store_dwordx4 v[40:43], v125, {WS}, s88 offen sc1'); e(f'buffer_store_dwordx4 v[44:47], v125, {WS}, s88 offen offset:1024 sc1')
lab('L_kvh2')
for i in range(8):
    src = (KF if i < 4 else VF) + 3*16384 + (i & 3)*4096
    e(f's_add_u32 m0, s55, {S[KVSLOT[3]] + 4096*i}'); e(f's_add_u32 s87, s55, {src}')
    e(f'buffer_load_dwordx4 v119, {WS}, s87 offen sc1 lds')
e(f'buffer_load_dwordx4 v[8:11], v125, {WS}, s85 offen sc1'); e(f'buffer_load_dwordx4 v[12:15], v125, {WS}, s85 offen offset:1024 sc1')
e('s_waitcnt vmcnt(10)')
flag_store('s89')
e(f's_cmp_lg_u32 {sW}, 13'); e('s_cbranch_scc1 L_nogen'); e('s_cmp_lg_u32 s2, 0'); e('s_cbranch_scc1 L_nogen')
e(f's_mov_b32 s87, {GEN}'); flag_store('s87')
lab('L_nogen')
e('s_waitcnt vmcnt(0)')
lds_signal(C_KVD)
e(f's_cmp_lg_u32 {sW}, 12'); e('s_cbranch_scc1 L_T5')
c('R1: reduce slice rb = (job rb>>3, lanes 8(rb&7)..+7, both quads) over the 32 partials of group hg')
e(f's_lshr_b32 s88, {sRB}, 3')
e(f's_lshl2_add_u32 s87, {sHG}, s88'); e('s_lshl_b32 s86, s87, 10'); e('s_lshl_b32 s87, s87, 9'); e(f's_add_u32 s87, s87, {F2}')
e('v_lshrrev_b32 v4, 4, v0'); e('v_lshlrev_b32 v4, 13, v4'); e('v_bfe_u32 v5, v0, 3, 1'); e('v_lshl_add_u32 v4, v5, 10, v4'); e('v_and_b32 v6, 7, v0'); e('v_lshl_add_u32 v4, v6, 4, v4')
e('v_lshlrev_b32 v6, 4, v6'); e('v_lshl_add_u32 v6, v5, 3, v6')
poll_flags('v119', 's87', 32)
e(f's_lshl_b32 s87, {sHG}, 18'); e('s_lshl_b32 s88, s88, 11'); e('s_add_u32 s87, s87, s88'); e(f's_and_b32 s88, {sRB}, 7'); e('s_lshl_b32 s88, s88, 7'); e('s_add_u32 s87, s87, s88'); e(f's_add_u32 s87, s87, {PART}')
e('s_add_u32 s86, s86, s88'); e(f's_add_u32 s86, s86, {KVF}')
for i in range(8):
    e(f'buffer_load_dwordx4 {vr(48+4*i)}, v4, {WS}, s87 offen sc1')
    if i < 7: e('s_add_u32 s87, s87, 32768')
e(f's_lshl_b32 s88, {sB}, 4'); e(f's_add_u32 s88, s88, {F2B}')
e('s_waitcnt vmcnt(0)')
pk_tree(48, 8)
for sw in ('v_permlane32_swap_b32', 'v_permlane16_swap_b32'):
    for r in range(4): e(f'v_mov_b32 v{52+r}, v{48+r}')
    e('s_nop 0')
    for r in range(4): e(f'{sw} v{48+r}, v{52+r}')
    e(f'v_pk_add_f32 v[48:49], v[48:49], v[52:53]'); e(f'v_pk_add_f32 v[50:51], v[50:51], v[54:55]')
e('v_cvt_pk_bf16_f32 v52, v48, v49'); e('v_cvt_pk_bf16_f32 v53, v50, v51')
e('s_mov_b64 exec, 0xffff')
e(f'buffer_store_dwordx2 v[52:53], v6, {WS}, s86 offen sc1')
e('s_mov_b64 exec, -1')
e('s_waitcnt vmcnt(0)')
flag_store('s88')
lab('L_T5')
e(f's_lshl_b32 s87, {sHG}, 9'); e(f's_add_u32 s87, s87, {F2B}')
poll_flags('v119', 's87', 32, sleep=16)
e(f's_lshl2_add_u32 s87, {sHG}, {sCT}'); e('s_lshl_b32 s87, s87, 10'); e(f's_add_u32 s87, s87, {KVF}')
e(f'buffer_load_dwordx4 v[16:19], v119, {WS}, s87 offen sc1'); e(f'buffer_load_dwordx4 v[20:23], v119, {WS}, s87 offen offset:2048 sc1')
e('s_waitcnt vmcnt(0)')
e('v_mfma_f32_32x32x16_bf16 v[28:43], v[16:19], v[8:11], 0')
e('v_mfma_f32_32x32x16_bf16 v[36+8:59], v[20:23], v[12:15], 0'.replace('36+8', '44'))
o_addr('s88')
e(f's_add_u32 s87, s88, {OB}'); e(f's_add_u32 s88, s88, {OA}')
for r in range(4): e(f'v_mov_b32 v{64+r}, -1')
e(f'buffer_store_dwordx4 v[64:67], v119, {WS}, s87 offen sc1'); e(f'buffer_store_dwordx4 v[64:67], v119, {WS}, s87 offen offset:1024 sc1')
e(f'v_add_f32 v60, {f32(1e-6)}, v36'); e(f'v_add_f32 v61, {f32(1e-6)}, v44')
for r in range(8): e(f'v_mov_b32 v{44+r}, v{52+r}')
e('s_call_b64 s[52:53], L_normstore')
e(f's_lshl3_add_u32 s86, {sRB}, {sHG}'); e(f's_lshl2_add_u32 s86, s86, {sG}'); e('s_lshl_b32 s86, s86, 4'); e(f's_add_u32 s86, s86, {F3}')
e('s_waitcnt vmcnt(0)')
flag_store('s86')
lds_wait(C_KVD, 4)
lab('L_getQ')
e(f'v_add_u32 v62, {QX}, v125')
e(f's_lshl_b32 s88, {sG}, 8'); e(f's_add_u32 s88, s88, {QN}'); e('v_lshrrev_b32 v63, 2, v119'); e('v_add_u32 v63, s88, v63')
e(f'ds_read_b128 {vr(Q0)}, v62'); e(f'ds_read_b128 {vr(Q1)}, v62 offset:1024'); e('ds_read_b32 v60, v63')
e('s_mov_b32 s84, 0'); e('s_mov_b32 s91, 0')

vKO, vVO, vIDX = 'v1', 'v2', 'v3'
lab('L_attn_setup')
nib = sum(KVSLOT[q] << (4*q) for q in range(4))
e(f's_lshl_b32 s87, {sKQ}, 2'); e(f's_lshr_b32 s87, {hex(nib)}, s87'); e('s_and_b32 s87, s87, 3'); e('s_lshl_b32 s87, s87, 15')
e(f'v_add_u32 {vKO}, s87, v119')
e('v_lshrrev_b32 v63, 5, v0'); e('v_lshlrev_b32 v63, 8, v63'); e('v_and_b32 v64, 15, v0'); e('v_lshl_add_u32 v63, v64, 4, v63')
e('s_add_u32 s87, s87, 16384'); e(f'v_add_u32 {vVO}, s87, v63')
e(f'v_mov_b32 {vIDX}, 0xdddddddd')
e('s_mov_b32 s92, 0x0000ffff'); e('s_mov_b32 s93, 0x0000ffff')
e('s_mov_b32 s94, 0x00110000'); e('s_mov_b32 s95, 0x00110000')
for r in range(16): e(f'v_mov_b32 v{O0+r}, 0')
maybe_bar()
for r in range(16): e(f'v_mov_b32 v{O1+r}, 0')
e('v_mov_b32 v64, 0'); e('v_mov_b32 v65, 0x3f803f80'); e('v_cndmask_b32 v64, v64, v65, s[94:95]')
for r in range(16): e(f'v_mov_b32 v{V0+r}, v64')
for r in range(8): e(f'v_mov_b32 v{SB+8+r}, 0')
e('s_mov_b32 s90, 8')
lab('L_prebar')
e('s_cmp_eq_u32 s91, 0'); e('s_cbranch_scc1 L_prebx'); e('s_barrier'); e('s_sub_u32 s91, s91, 1'); e('s_branch L_prebar')
lab('L_prebx')
def loadK(buf, off): e(f'ds_read_b128 {vr(buf)}, {vKO} offset:{off}')
def loadV(buf, off):
    e('s_mov_b64 exec, s[92:93]')
    e(f'ds_read_b128 {vr(buf)}, {vVO} offset:{off}'); e(f'ds_read_b128 {vr(buf+4)}, {vVO} offset:{off+512}')
    e('s_mov_b64 exec, -1')
e(f'ds_read_b32 v61, {vCNT} offset:{C_KM}')
loadK(K0, 0); loadV(V0, 0); loadK(K1, 1024)
e('s_waitcnt lgkmcnt(3)')
e('v_mul_f32 v60, v60, v61'); e('v_sqrt_f32 v60, v60'); e(f'v_mov_b32 v61, {f32(40.0)}'); e(f's_mov_b32 s87, {f32(-1.02)}')
e('v_fma_f32 v60, v60, s87, v61')
for r in range(16): e(f'v_mov_b32 v{CC+r}, v60')
e(f's_cmp_eq_u32 {sKQ}, 1'); e('s_cbranch_scc0 L_p2'); e('s_setprio 1'); lab('L_p2')
e(f's_cmp_ge_u32 {sKQ}, 2'); e('s_cbranch_scc0 L_p3'); e('s_setprio 0'); lab('L_p3')
def QK(s, k, q): e(f'v_mfma_f32_32x32x16_bf16 {vr(s,16)}, {vr(k)}, {vr(q)}, {vr(CC,16)}')
def SM(o, v, s): e(f'v_smfmac_f32_32x32x32_bf16 {vr(o,16)}, {vr(v)}, {vr(s,8)}, {vIDX}')
def EX(s, a, b):
    for r in range(a, b): e(f'v_exp_f32 v{s+r}, v{s+r}')
QK(SA, K0, Q0)
e('s_nop 11')
stamp(4)
L.append('.p2align 4')
lab('L_loop')
for t, (kc, kn, vc, vn) in enumerate(((K0, K1, V0, V1), (K1, K0, V1, V0))):
    EX(SA, 0, 2)
    SM(O1, vn+4, SB+8)
    loadV(vn, 1024*(t+1))
    EX(SA, 2, 5)
    QK(SB, kc, Q1)
    loadK(kc, 1024*(t+2))
    EX(SA, 5, 10)
    e('s_waitcnt lgkmcnt(3)')
    SM(O0, vc, SA)
    EX(SA, 10, 16)
    EX(SB, 0, 2)
    SM(O0, vc+4, SA+8)
    EX(SB, 2, 5)
    QK(SA, kn, Q0)
    EX(SB, 5, 10)
    SM(O1, vc, SB)
    e('s_cmp_eq_u32 s84, 0'); e(f's_cbranch_scc0 L_lbar{t}')
    lab(f'L_lbret{t}')
    if t == 1:
        e(f'v_add_u32 {vKO}, 2048, {vKO}'); e(f'v_add_u32 {vVO}, 2048, {vVO}')
        e('s_sub_u32 s90, s90, 1'); e('s_cmp_lg_u32 s90, 0')
    EX(SB, 10, 16)
e('s_cbranch_scc1 L_loop')
e('s_nop 0')
SM(O1, V1+4, SB+8)
e('s_setprio 3')
e('s_waitcnt lgkmcnt(0)')
stamp(5)
c('arrival ticket')
e(f's_lshl_b32 s87, {sG}, 2'); e(f's_add_u32 s87, s87, {CNT}'); e('v_mov_b32 v94, s87')
e('v_mov_b32 v120, 1'); e('s_mov_b64 exec, 1'); e(f'ds_add_rtn_u32 v121, v94, v120 offset:{C_TICKET}'); e('s_mov_b64 exec, -1')
e(f's_mul_i32 s87, {sG}, 4608'); e(f's_add_u32 s87, s87, {OSUM}'); e('v_add_u32 v92, s87, v119')
e('v_lshrrev_b32 v93, 2, v119'); e('s_add_u32 s87, s87, 4096'); e('v_add_u32 v93, s87, v93')
e('s_waitcnt lgkmcnt(0)')
e('v_readfirstlane_b32 s84, v121')
e('s_nop 0')
e('s_cmp_eq_u32 s84, 0'); e('s_cbranch_scc1 L_first')
lds_wait(C_DONE, 's84', addr='v94', sleep=1)
for i in range(4): e(f'ds_read_b128 {vr(60+4*i)}, v92 offset:{1024*i}')
e('ds_read2st64_b32 v[76:77], v93 offset0:0 offset1:1')
e('s_waitcnt lgkmcnt(0)')
for r in range(4): e(f'v_pk_add_f32 {vr(O0+2*r,2)}, {vr(O0+2*r,2)}, {vr(60+2*r,2)}')
for r in range(4): e(f'v_pk_add_f32 {vr(O1+2*r,2)}, {vr(O1+2*r,2)}, {vr(68+2*r,2)}')
e(f'v_add_f32 v{O0+8}, v{O0+8}, v76'); e(f'v_add_f32 v{O1+8}, v{O1+8}, v77')
e('s_cmp_eq_u32 s84, 3'); e('s_cbranch_scc1 L_last')
e('s_branch L_wr')
lab('L_first')
lds_wait(C_PKV, 4)
lab('L_wr')
e(f'ds_write_b128 v92, {vr(O0)}'); e(f'ds_write_b128 v92, {vr(O0+4)} offset:1024')
e(f'ds_write_b128 v92, {vr(O1)} offset:2048'); e(f'ds_write_b128 v92, {vr(O1+4)} offset:3072')
e(f'ds_write2st64_b32 v93, v{O0+8}, v{O1+8} offset0:0 offset1:1')
e('s_waitcnt lgkmcnt(0)')
lds_signal(C_DONE, 'v94')
e('s_branch L_role')
lab('L_last')
c('safety check of the stand-in max: row sums must not have underflowed')
e(f'v_min_f32 v60, v{O0+8}, v{O1+8}'); e(f's_mov_b32 s87, {f32(2.0**-50)}')
e('v_cmp_nle_f32 vcc, s87, v60')
e('s_nop 1'); e('s_cmp_lg_u64 vcc, 0'); e('s_cbranch_scc1 L_fallback')
lab('L_norm')
e(f'v_mov_b32 v60, v{O0+8}'); e(f'v_mov_b32 v61, v{O1+8}')
o_addr('s88'); e(f's_add_u32 s88, s88, {OB}')
e('s_call_b64 s[52:53], L_normstore')
lds_signal(C_OWN)
lab('L_role')
stamp(6)
e(f's_cmp_ge_u32 {sKQ}, 2'); e('s_cbranch_scc1 L_fin')
e(f's_cmp_eq_u32 {sKQ}, 0'); e('s_cbranch_scc1 L_T6')
lds_signal(C_FIN1)
e('s_branch L_fin')
lab('L_T6')
X = [S[k] for k in KVSLOT]
nsync = [0]
def sync4(sleep=1):
    nsync[0] += 4
    lds_signal(C_SYNC); lds_wait(C_SYNC, nsync[0], sleep=sleep)
srd(2, 68, 0x80000); srd(6, 78, 0x80000); srd(7, 80, 0x400000)
e('v_lshrrev_b32 v6, 3, v0'); e('v_and_b32 v7, 7, v0')
e('v_bfe_u32 v8, v6, 1, 1'); e('v_lshlrev_b32 v8, 2, v8'); e('v_xor_b32 v8, v7, v8'); e('v_lshlrev_b32 v9, 10, v6'); e('v_lshl_add_u32 v117, v8, 4, v9')
c('w read addresses: v2 (ct 0), v3 (ct 1) = X[kh] + lane part')
e(f's_lshl_b32 s87, {sCT}, 6'); e(f'v_xor_b32 v2, s87, {vWB}')
e(f's_cmp_eq_u32 {sCT}, 0'); e(f's_mov_b32 s87, {X[1]}'); e(f's_cselect_b32 s87, {X[0]}, s87'); e('v_add_u32 v2, s87, v2'); e('v_xor_b32 v3, 64, v2')
c('o fragment base: ((rb*2+rh)*32 + 16kh)*1024')
e(f's_lshl1_add_u32 s62, {sRB}, {sRH}'); e(f's_lshl1_add_u32 s62, s62, {sCT}'); e('s_lshl_b32 s62, s62, 14')
def wo_half(srdn, half):
    e(f's_lshl_b32 s88, {sG}, 16'); e(f's_lshl_b32 s89, {sHG}, 7'); e('s_add_u32 s88, s88, s89')
    if half: e('s_add_u32 s88, s88, 0x40000')
    e(f's_lshl_b32 s89, {sG}, 13'); e(f's_add_u32 s89, s89, {X[half]}')
    e('s_mov_b32 s84, 8')
    l = uid('wo')
    lab(l)
    e('s_mov_b32 m0, s89'); e('s_add_u32 s89, s89, 1024')
    e(f'buffer_load_dwordx4 v117, {srdn}, s88 offen lds')
    e('s_add_u32 s88, s88, 8192'); e('s_sub_u32 s84, s84, 1'); e('s_cmp_lg_u32 s84, 0'); e(f's_cbranch_scc1 {l}')
sync4(4)
wo_half(WOA, 0)
lds_wait(C_FIN1, 4, sleep=16)
wo_half(WOA, 1)
e(f's_lshl_b32 s87, {sRB}, 9'); e(f's_add_u32 s87, s87, {F3}')
poll_flags('v119', 's87', 32)
sync4()
stamp(7)
e(f's_add_u32 s63, s62, {OA}')
e('s_call_b64 s[52:53], L_ogemm')
sync4()
e(f's_mov_b32 s86, {X[0]}'); e('s_mov_b32 s85, 0'); e('s_mov_b32 s84, 4')
e('s_call_b64 s[52:53], L_epi')
sync4()
wo_half(WOB, 0); wo_half(WOB, 1)
e('s_waitcnt vmcnt(0)')
sync4()
stamp(8)
lds_wait(C_OWN, opt('own', 4), sleep=2)
stamp(9)
e(f's_add_u32 s63, s62, {OB}')
e('s_call_b64 s[52:53], L_ogemm')
stamp(10)
if opt('own', 4) < 4: lds_wait(C_OWN, 4, sleep=1)
e(f's_mov_b32 s86, {X[2]}'); e('s_movk_i32 s85, 1024'); e('s_mov_b32 s84, 8')
e('s_call_b64 s[52:53], L_epi')
lab('L_fin')
if DIAG:
    e('s_waitcnt vmcnt(0)')
    stamp(11)
    e('s_lshl_b32 s87, s2, 4'); e(f's_add_u32 s87, s87, {sW}'); e('s_lshl_b32 s87, s87, 8'); e(f's_add_u32 s87, s87, {DBG}')
    e('v_lshlrev_b32 v4, 2, v0'); e(f'buffer_store_dword v127, v4, {WS}, s87 offen')
    if FINE: e('s_add_u32 s87, s87, 0x100000'); e(f'buffer_store_dword v126, v4, {WS}, s87 offen')
e('s_endpgm')

lab('L_gemm8')
c('8 k-steps: x at v16..19 + 8192*(st>>2), w at v20 + 2048*st ; acc v[32:47] (D = w^T x^T)')
def rd(st):
    b = st % 4
    e(f'ds_read_b128 {vr(48+8*b)}, v{16 + st % 4} offset:{8192*(st//4)}')
    e(f'ds_read_b64_tr_b16 {vr(52+8*b,2)}, v20 offset:{2048*st}')
    e(f'ds_read_b64_tr_b16 {vr(54+8*b,2)}, v20 offset:{2048*st+512}')
for st in range(4): rd(st)
for st in range(8):
    e(f's_waitcnt lgkmcnt({3*min(3, 7-st)})')
    b = st % 4
    e(f'v_mfma_f32_32x32x16_bf16 v[32:47], {vr(52+8*b)}, {vr(48+8*b)}, v[32:47]')
    if st + 4 < 8: rd(st + 4)
e('s_setpc_b64 s[52:53]')

lab('L_ogemm')
c('16 k-steps x 2 column tiles. o fragments from WS[s63 + step*1024] (validated against the all-ones sentinel), w from LDS v2/v3')
AC = [12, 28]; FR = 48; WB = [(4, 8), (44, 112)]
def oload(grp):
    e(f's_add_u32 s87, s63, {4096*grp}')
    for i in range(4): e(f'buffer_load_dwordx4 {vr(FR+16*grp+4*i)}, v119, {WS}, s87 offen offset:{1024*i} sc1')
def wrd(st):
    for ct in range(2):
        r = WB[st % 2][ct]
        e(f'ds_read_b64_tr_b16 {vr(r,2)}, v{2+ct} offset:{2048*st}'); e(f'ds_read_b64_tr_b16 {vr(r+2,2)}, v{2+ct} offset:{2048*st+512}')
for grp in range(4): oload(grp)
wrd(0); wrd(1)
e('s_mov_b32 s96, 0')
for grp in range(4):
    lc, lo = uid('oc'), uid('oo')
    e(f's_waitcnt vmcnt({12-4*grp})')
    lab(lc)
    b = FR + 16*grp
    e(f'v_max3_u32 v120, v{b}, v{b+1}, v{b+2}')
    for i in range(6): e(f'v_max3_u32 v120, v{b+3+2*i}, v{b+4+2*i}, v120')
    e(f'v_max_u32 v120, v{b+15}, v120')
    e('v_cmp_eq_u32 vcc, -1, v120')
    e('s_add_u32 s96, s96, 1'); e(f's_cmp_gt_u32 s96, {SPIN_CAP}'); e(f's_cbranch_scc1 {lo}')
    e('s_cmp_eq_u64 vcc, 0'); e(f's_cbranch_scc1 {lo}')
    for g2 in range(grp, 4): oload(g2)
    e(f's_waitcnt vmcnt({12-4*grp})')
    e(f's_branch {lc}')
    lab(lo)
    for i in range(4):
        st = 4*grp + i
        e(f's_waitcnt lgkmcnt({4 if st < 15 else 0})')
        for ct in range(2):
            e(f'v_mfma_f32_32x32x16_bf16 {vr(AC[ct],16)}, {vr(WB[st%2][ct])}, {vr(b+4*i)}, ' + ('0' if st == 0 else vr(AC[ct],16)))
        if st + 2 < 16: wrd(st + 2)
e('s_setpc_b64 s[52:53]')

lab('L_epi')
c('2-way K reduction through LDS at s86 (counter target s84), then store tile (rh, ct = kh): column byte offset s85')
e(f's_xor_b32 s87, {sG}, 1'); e('s_lshl_b32 s87, s87, 12'); e('s_add_u32 s87, s87, s86'); e('v_add_u32 v4, s87, v119')
e(f's_lshl_b32 s87, {sG}, 12'); e('s_add_u32 s87, s87, s86'); e('v_add_u32 v5, s87, v119')
e('v_and_b32 v6, 31, v0'); e('v_lshrrev_b32 v7, 5, v0'); e('v_lshlrev_b32 v8, 11, v6'); e('v_lshl_add_u32 v8, v7, 4, v8')
e(f's_cmp_eq_u32 {sCT}, 0'); e('s_cbranch_scc1 L_ep0')
for i in range(4): e(f'ds_write_b128 v4, {vr(AC[0]+4*i)} offset:{1024*i}')
e('s_branch L_ep1')
lab('L_ep0')
for i in range(4): e(f'ds_write_b128 v4, {vr(AC[1]+4*i)} offset:{1024*i}')
e('s_waitcnt lgkmcnt(0)')
for r in range(16): e(f'v_mov_b32 v{AC[1]+r}, v{AC[0]+r}')
lab('L_ep1')
e('s_waitcnt lgkmcnt(0)')
lds_signal(C_XCH)
e(f's_lshl_b32 s89, {sRB}, 17'); e(f's_lshl_b32 s87, {sRH}, 16'); e('s_add_u32 s89, s89, s87'); e('s_add_u32 s89, s89, s85')
e(f's_lshl_b32 s87, {sHG}, 7'); e('s_add_u32 s89, s89, s87'); e(f's_lshl_b32 s87, {sCT}, 6'); e('s_add_u32 s89, s89, s87')
lds_wait(C_XCH, 's84', sleep=0)
for i in range(4): e(f'ds_read_b128 {vr(48+4*i)}, v5 offset:{1024*i}')
e('s_waitcnt lgkmcnt(0)')
for r in range(8): e(f'v_pk_add_f32 {vr(AC[1]+2*r,2)}, {vr(AC[1]+2*r,2)}, {vr(48+2*r,2)}')
for r in range(8): e(f'v_cvt_pk_bf16_f32 v{48+r}, v{AC[1]+2*r}, v{AC[1]+2*r+1}')
e('s_nop 1')
e('v_permlane32_swap_b32 v48, v50'); e('v_permlane32_swap_b32 v49, v51'); e('v_permlane32_swap_b32 v52, v54'); e('v_permlane32_swap_b32 v53, v55')
e(f'buffer_store_dwordx4 v[48:51], v8, {OUT}, s89 offen'); e(f'buffer_store_dwordx4 v[52:55], v8, {OUT}, s89 offen offset:32')
e('s_setpc_b64 s[52:53]')

lab('L_normstore')
c('numerators v28..35 / v60, v44..51 / v61 -> two bf16 fragments at WS[s88]')
e('v_rcp_f32 v60, v60'); e('v_rcp_f32 v61, v61'); e('s_nop 0')
for r in range(8): e(f'v_mul_f32 v{28+r}, v{28+r}, v60')
for r in range(8): e(f'v_mul_f32 v{44+r}, v{44+r}, v61')
for r in range(4): e(f'v_cvt_pk_bf16_f32 v{64+r}, v{28+2*r}, v{28+2*r+1}')
for r in range(4): e(f'v_cvt_pk_bf16_f32 v{68+r}, v{44+2*r}, v{44+2*r+1}')
e('v_permlane32_swap_b32 v64, v66'); e('v_permlane32_swap_b32 v65, v67')
e('v_permlane32_swap_b32 v68, v70'); e('v_permlane32_swap_b32 v69, v71')
e(f'buffer_store_dwordx4 v[64:67], v119, {WS}, s88 offen sc1')
e(f'buffer_store_dwordx4 v[68:71], v119, {WS}, s88 offen offset:1024 sc1')
e('s_setpc_b64 s[52:53]')

for t in range(2):
    lab(f'L_lbar{t}')
    e('s_barrier'); e('s_sub_u32 s84, s84, 1'); e('s_cmp_lg_u32 s84, 0'); e(f's_cbranch_scc1 L_lbret{t}'); e('s_setprio 2'); e(f's_branch L_lbret{t}')
lab('L_fallback')
e('v_mov_b32 v116+6, 0xff800000'.replace('116+6', '122')); e('v_mov_b32 v123, 0xff800000')
e(f's_mov_b32 s86, {KF}')
lab('L_mx')
e(f'buffer_load_dwordx4 {vr(K0)}, v119, {WS}, s86 offen sc1')
e('s_add_u32 s86, s86, 1024')
e('s_waitcnt vmcnt(0)')
e(f'v_mfma_f32_32x32x16_bf16 {vr(SA,16)}, {vr(K0)}, {vr(Q0)}, 0')
e(f'v_mfma_f32_32x32x16_bf16 {vr(SB,16)}, {vr(K0)}, {vr(Q1)}, 0')
e('s_nop 11')
for r in range(8): e(f'v_max3_f32 v122, v{SA+2*r}, v{SA+2*r+1}, v122')
for r in range(8): e(f'v_max3_f32 v123, v{SB+2*r}, v{SB+2*r+1}, v123')
e(f's_cmp_lt_u32 s86, {KF + 0x10000}'); e('s_cbranch_scc1 L_mx')
e('v_mov_b32 v60, v122'); e('v_mov_b32 v61, v123'); e('s_nop 1')
e('v_permlane32_swap_b32 v122, v60'); e('v_permlane32_swap_b32 v123, v61')
e('v_max_f32 v122, v122, v60'); e('v_max_f32 v123, v123, v61')
for r in range(9): e(f'v_mov_b32 v{O0+r}, 0'); e(f'v_mov_b32 v{O1+r}, 0')
e('v_lshrrev_b32 v63, 5, v0'); e('v_lshlrev_b32 v63, 8, v63'); e('v_and_b32 v64, 15, v0'); e(f'v_lshl_add_u32 {vVO}, v64, 4, v63')
e('s_mov_b32 s86, 0')
lab('L_fl')
e(f's_add_u32 s87, s86, {KF}'); e(f's_add_u32 s88, s86, {VF}')
e(f'buffer_load_dwordx4 {vr(K0)}, v119, {WS}, s87 offen sc1')
e('s_mov_b64 exec, s[92:93]')
e(f'buffer_load_dwordx4 {vr(V0)}, {vVO}, {WS}, s88 offen sc1'); e(f'buffer_load_dwordx4 {vr(V0+4)}, {vVO}, {WS}, s88 offen offset:512 sc1')
e('s_mov_b64 exec, -1')
e('s_add_u32 s86, s86, 1024')
e('s_waitcnt vmcnt(0)')
e(f'v_mfma_f32_32x32x16_bf16 {vr(SA,16)}, {vr(K0)}, {vr(Q0)}, 0')
e(f'v_mfma_f32_32x32x16_bf16 {vr(SB,16)}, {vr(K0)}, {vr(Q1)}, 0')
e('s_nop 11')
for r in range(16): e(f'v_sub_f32 v{SA+r}, v{SA+r}, v122')
for r in range(16): e(f'v_sub_f32 v{SB+r}, v{SB+r}, v123')
EX(SA, 0, 16); EX(SB, 0, 16)
e('s_nop 1')
SM(O0, V0, SA); SM(O0, V0+4, SA+8); SM(O1, V0, SB); SM(O1, V0+4, SB+8)
e('s_nop 11')
e('s_cmp_lt_u32 s86, 0x10000'); e('s_cbranch_scc1 L_fl')
e('s_branch L_norm')
lab('L_end')
e('s_endpgm')

errs = check(L)
for x in errs: print('HAZARD', x, file=sys.stderr)

ref = open(f'cdna_kernels/{NAME}.s.ref').read().splitlines()
head = [l for l in ref if l.startswith(';') and '@launch' not in l]
out = head + [f'; @launch grid=(256,1,1) block=(1024,1,1) lds={LDS_BYTES}',
  '.amdgcn_target "amdgcn-amd-amdhsa--gfx950"', '.text', f'.globl {NAME}_kernel', '.p2align 8', f'.type {NAME}_kernel,@function'] + L + [
  '.section .rodata,"a"', '.p2align 6', f'.amdhsa_kernel {NAME}_kernel',
  '  .amdhsa_next_free_vgpr 128', '  .amdhsa_next_free_sgpr 102', '  .amdhsa_accum_offset 128', '  .amdhsa_group_segment_fixed_size 0',
  '  .amdhsa_kernarg_size 88', '  .amdhsa_user_sgpr_count 2', '  .amdhsa_user_sgpr_kernarg_segment_ptr 1', '  .amdhsa_system_sgpr_workgroup_id_x 1',
  '.end_amdhsa_kernel']
dst = [a for a in sys.argv[1:] if not a.startswith('--')]
open(dst[0] if dst else f'cdna_kernels/{NAME}.s', 'w').write('\n'.join(out) + '\n')
print('instructions:', sum(1 for l in L if l.startswith('    ') and not l.strip().startswith(';')), 'hazards:', len(errs), 'KVSLOT', KVSLOT, 'VM', VM, 'K0_ISS', K0_ISS, 'K0_READY', K0_READY)
```
